```python
import torch

def _softmax(x, axis=-1):
    return torch.softmax(x, dim=axis)
def _gelu(x):
    return torch.nn.functional.gelu(x, approximate="tanh")
def _silu(x):
    return torch.nn.functional.silu(x)
def _sigmoid(x):
    return torch.sigmoid(x)
def _layernorm(x, axis=-1, eps=1e-5):
    m = x.mean(dim=axis, keepdim=True)
    v = x.var(dim=axis, keepdim=True, unbiased=False)
    return (x - m) / torch.sqrt(v + eps)
def _scatter_add(tgt, idx, src, axis=0):
    return tgt.clone().index_add_(axis, idx, src)
def _segment_sum(src, seg, n):
    out = torch.zeros((n,) + src.shape[1:], dtype=src.dtype)
    return out.index_add_(0, seg, src)
def _pad(x, pw):
    flat = tuple(v for pair in reversed(pw) for v in pair)
    return torch.nn.functional.pad(x, flat)

kernel_name = 'interleave_layers__grouped_kv_mqa__moe_arch_mod__prompt'

def setup_inputs():

    _w = (lambda a: (lambda t: t.to(torch.bfloat16) if t.is_floating_point() else t)(torch.as_tensor(a)))
    def _A_setup():
        B, S, D, H = 1, 2048, 512, 32
        Dh = D // H
        return {
            "x": _w((lambda *s: torch.randn(*s, dtype=torch.bfloat16) * 0.05)(B, S, D)),
            "wq": _w((lambda *s: torch.randn(*s, dtype=torch.bfloat16) * 0.05)(D, H * Dh)),
            "wk": _w((lambda *s: torch.randn(*s, dtype=torch.bfloat16) * 0.05)(D, Dh)),
            "wv": _w((lambda *s: torch.randn(*s, dtype=torch.bfloat16) * 0.05)(D, Dh)),
            "wo": _w((lambda *s: torch.randn(*s, dtype=torch.bfloat16) * 0.05)(H * Dh, D)),
        }
    _A_in = _A_setup()

    def _B_setup():
        B, S, D, F, C = 1, 2048, 512, 1792, 1
        return {
            "x": _w((lambda *s: torch.randn(*s, dtype=torch.bfloat16) * 0.05)(B, S, D)),
            "w_r": _w((lambda *s: torch.randn(*s, dtype=torch.bfloat16) * 0.05)(D)),
            "w_gate": _w((lambda *s: torch.randn(*s, dtype=torch.bfloat16) * 0.05)(D, F)),
            "w_up": _w((lambda *s: torch.randn(*s, dtype=torch.bfloat16) * 0.05)(D, F)),
            "w_down": _w((lambda *s: torch.randn(*s, dtype=torch.bfloat16) * 0.05)(F, D)),
        }
    _B_in = _B_setup()

    return {
        "A_x": _A_in["x"],
        "A_wq": _A_in["wq"],
        "A_wk": _A_in["wk"],
        "A_wv": _A_in["wv"],
        "A_wo": _A_in["wo"],
        "B_x": _B_in["x"],
        "B_w_r": _B_in["w_r"],
        "B_w_gate": _B_in["w_gate"],
        "B_w_up": _B_in["w_up"],
        "B_w_down": _B_in["w_down"],
    }

def reference(A_x, A_wq, A_wk, A_wv, A_wo, B_x, B_w_r, B_w_gate, B_w_up, B_w_down):
    def _A_ref(x, wq, wk, wv, wo):
        B, S, D = x.shape
        H = 32
        Dh = D // H
        q = (lambda x, *d: x.permute(*d))((x @ wq).reshape(B, S, H, Dh), 0, 2, 1, 3)
        k = x @ wk
        v = x @ wv
        scores = torch.einsum("bhqd,bkd->bhqk", q, k) * (Dh ** -0.5)
        p = _softmax(scores, axis=-1)
        o = torch.einsum("bhqk,bkd->bhqd", p, v)
        return (lambda x, *d: x.permute(*d))(o, 0, 2, 1, 3).reshape(B, S, H * Dh) @ wo

    def _B_ref(x, w_r, w_gate, w_up, w_down):
        B, S, D = x.shape
        C = 1
        r = x @ w_r
        idx = torch.argsort(-r, axis=-1)[:, :C]
        idx_e = (lambda x, n, axis: torch.repeat_interleave(x, n, dim=axis))(idx.reshape(B, C, 1), D, axis=2)
        x_sel = (lambda x, i, axis: torch.take_along_dim(x, i, dim=axis))(x, idx_e, axis=1)
        g = _silu(x_sel @ w_gate)
        u = x_sel @ w_up
        y = (g * u) @ w_down
        r_sel = _sigmoid((lambda x, i, axis: torch.take_along_dim(x, i, dim=axis))(r, idx, axis=1))
        y = y * r_sel.reshape(B, C, 1)
        b_off = (torch.arange(B) * S).reshape(B, 1)
        flat_idx = (idx + b_off).reshape(B * C)
        zero = (x * 0.0).reshape(B * S, D)
        upd = _scatter_add(zero, flat_idx, y.reshape(B * C, D), axis=0)
        return x + upd.reshape(B, S, D)

    x = A_x
    x = x + _A_ref(_layernorm(x, axis=-1), A_wq, A_wk, A_wv, A_wo)
    x = x + _B_ref(_layernorm(x, axis=-1), B_w_r, B_w_gate, B_w_up, B_w_down)
    x = x + _A_ref(_layernorm(x, axis=-1), A_wq, A_wk, A_wv, A_wo)
    x = x + _B_ref(_layernorm(x, axis=-1), B_w_r, B_w_gate, B_w_up, B_w_down)
    return x
```

```python
import sys
def kernel(name, body, iters, nvgpr=128):
    return f"""
.text
.globl {name}
.p2align 8
.type {name},@function
{name}:
    s_load_dwordx2 s[4:5], s[0:1], 0
    v_lshlrev_b32 v1, 4, v0
    s_lshl_b32 s3, s2, 14
    v_add_u32 v1, s3, v1
    s_waitcnt lgkmcnt(0)
    s_mov_b32 s8, s4
    s_mov_b32 s9, s5
    s_mov_b32 s10, 0x1000000
    s_mov_b32 s11, 0x00020000
""" + "".join(f"    v_mov_b32 v{i}, 0x3c003c00\n" for i in range(8, nvgpr)) + f"""
    s_mov_b32 s12, {iters}
    s_barrier
    s_memtime s[14:15]
    s_memrealtime s[16:17]
    s_waitcnt lgkmcnt(0)
.p2align 6
L_{name}:
{body}
    s_sub_u32 s12, s12, 1
    s_cmp_lg_u32 s12, 0
    s_cbranch_scc1 L_{name}
    s_memtime s[18:19]
    s_memrealtime s[20:21]
    s_waitcnt lgkmcnt(0)
    s_sub_u32 s18, s18, s14
    s_subb_u32 s19, s19, s15
    s_sub_u32 s20, s20, s16
    s_subb_u32 s21, s21, s17
    v_mov_b32 v4, s18
    v_mov_b32 v5, s19
    v_mov_b32 v6, s20
    v_mov_b32 v7, s21
    buffer_store_dwordx4 v[4:7], v1, s[8:11], 0 offen
    s_waitcnt vmcnt(0)
    s_endpgm
.section .rodata,"a"
.p2align 6
.amdhsa_kernel {name}
  .amdhsa_next_free_vgpr {nvgpr}
  .amdhsa_next_free_sgpr 32
  .amdhsa_accum_offset {nvgpr}
  .amdhsa_group_segment_fixed_size 0
  .amdhsa_kernarg_size 8
  .amdhsa_user_sgpr_count 2
  .amdhsa_user_sgpr_kernarg_segment_ptr 1
  .amdhsa_system_sgpr_workgroup_id_x 1
.end_amdhsa_kernel
"""
def meta(names, nvgpr=128):
    s = ".amdgpu_metadata\n---\namdhsa.version: [1, 2]\namdhsa.kernels:\n"
    for n in names:
        s += f"""  - .name: {n}
    .symbol: {n}.kd
    .kernarg_segment_size: 8
    .kernarg_segment_align: 8
    .group_segment_fixed_size: 0
    .private_segment_fixed_size: 0
    .wavefront_size: 64
    .sgpr_count: 32
    .vgpr_count: {nvgpr}
    .max_flat_workgroup_size: 1024
    .args:
      - {{.name: kernargs, .size: 8, .offset: 0, .value_kind: by_value}}
"""
    s += "...\n.end_amdgpu_metadata\n"
    return s

def exps(n, src=16, dst=32): return [f"    v_exp_f32 v{dst+i%16}, v{src+i%16}" for i in range(n)]
def exph(n, src=16, dst=32): return [f"    v_exp_f16 v{dst+i%16}, v{src+i%16}" for i in range(n)]
def cvts(n, src=32, dst=48): return [f"    v_cvt_pk_bf16_f32 v{dst+i%8}, v{src+(2*i)%16}, v{src+(2*i+1)%16}" for i in range(n)]
def fmas(n, dst=64): return [f"    v_fma_f32 v{dst+i%16}, v{16+i%16}, v{17+i%16}, v{dst+i%16}" for i in range(n)]
def adds(n, dst=64): return [f"    v_add_f32 v{dst+i%16}, v{16+i%16}, v{dst+i%16}" for i in range(n)]
def pkfma(n, dst=64): return [f"    v_pk_fma_f32 v[{dst+2*(i%8)}:{dst+1+2*(i%8)}], v[{16+2*(i%8)}:{17+2*(i%8)}], v[{18+2*(i%7)}:{19+2*(i%7)}], v[{dst+2*(i%8)}:{dst+1+2*(i%8)}]" for i in range(n)]
def pkmul(n, dst=64): return [f"    v_pk_mul_f32 v[{dst+2*(i%8)}:{dst+1+2*(i%8)}], v[{16+2*(i%8)}:{17+2*(i%8)}], v[{18+2*(i%7)}:{19+2*(i%7)}]" for i in range(n)]
def mfma32(d, a, b, c): return f"    v_mfma_f32_32x32x16_bf16 v[{d}:{d+15}], v[{a}:{a+3}], v[{b}:{b+3}], {c}"
def mfma16(d, a, b, c): return f"    v_mfma_f32_16x16x32_bf16 v[{d}:{d+3}], v[{a}:{a+3}], v[{b}:{b+3}], {c}"
def interleave(*lists):
    tot = sum(len(l) for l in lists)
    items = []
    for l in lists:
        for i, x in enumerate(l):
            items.append(((i + 0.5) / len(l), x))
    items.sort(key=lambda t: t[0])
    return [x for _, x in items]

K = {}
K["exp16"] = exps(16)
K["exph16"] = exph(16)
K["fma32"] = fmas(32)
K["add32"] = adds(32)
K["pkfma16"] = pkfma(16)
K["pkmul16"] = pkmul(16)
K["cvt16"] = cvts(16, src=16)
K["exp16_cvt8"] = interleave(exps(16), cvts(8, src=96))
K["exp16_fma16"] = interleave(exps(16), fmas(16))
K["exp16_fma32"] = interleave(exps(16), fmas(32))
K["exp16_pkfma16"] = interleave(exps(16), pkfma(16))
m3 = [mfma32(96, 8, 12, "0"), mfma32(112, 8, 48, "v[112:127]"), mfma32(112, 12, 52, "v[112:127]")]
K["mfma3"] = m3
K["exp16_mfma3"] = interleave(exps(16), m3)
K["exp16_cvt8_mfma3"] = interleave(exps(16), cvts(8, src=80, dst=56), m3)
m4 = [mfma32(96, 8, 12, "0"), mfma16(112, 8, 48, "v[112:115]"), mfma16(116, 12, 52, "v[116:119]")]
K["exp16_cvt8_m32_2m16"] = interleave(exps(16), cvts(8, src=80, dst=56), m4)
K["fma32_mfma3"] = interleave(fmas(32), m3)
out = '.amdgcn_target "amdgcn-amd-amdhsa--gfx950"\n'
names = []
REP = 4
for n, b in K.items():
    nm = f"mb_{n}"
    names.append(nm)
    out += kernel(nm, "\n".join(b * REP), 2000)
out += meta(names)
open("mb.s", "w").write(out)
open("mb_names.txt", "w").write("\n".join(names))
```

```python
from mb_gen import meta
def mfma32(d, a, b, c): return f"    v_mfma_f32_32x32x16_bf16 v[{d}:{d+15}], v[{a}:{a+3}], v[{b}:{b+3}], {c}\n"
def sm32(d, a, b): return f"    v_smfmac_f32_32x32x32_bf16 v[{d}:{d+15}], v[{a}:{a+3}], v[{b}:{b+7}], v12\n"
def ex(S, lo, hi): return "".join(f"    v_exp_f32 v{S+i}, v{S+i}\n" for i in range(lo, hi))
def comp(ntiles, extras):
    s = ""
    for t in range(ntiles):
        Sa, Sb = (64, 80) if t % 2 == 0 else (80, 64)
        s += ex(Sa, 0, 4) + sm32(112, 100, Sb+8) + ex(Sa, 4, 8) + mfma32(Sb, 96, 104, "0") + ex(Sa, 8, 12)
        if extras and t == 1:
            s += "    ds_write_b128 v9, v[112:115]\n    ds_write_b128 v9, v[116:119] offset:1024\n    ds_write_b32 v10, v120 offset:2048\n"
            s += "    v_mfma_f32_32x32x8_bf16 v[112:127], v[96:97], v[96:97], 0\n"
        if extras and t == 3:
            s += "    s_waitcnt lgkmcnt(0)\n    s_barrier\n    ds_read_b128 v[104:107], v9\n"
        if extras and t == 5:
            s += "    s_waitcnt lgkmcnt(0)\n"
        s += sm32(112, 96, Sa) + ex(Sa, 12, 16)
    if not extras: s += "    s_barrier\n"
    return s
def helper(kind, gap):
    s = ""
    if kind >= 1:
        for g in range(2):
            s += "    s_waitcnt vmcnt(16)\n"
            for i in range(16):
                r = 32 + 64*g + 4*i
                if kind == 1:
                    s += f"    v_mfma_f32_16x16x32_bf16 v[{16+4*(i%4)}:{19+4*(i%4)}], v[{r}:{r+3}], v[28:31], v[{16+4*(i%4)}:{19+4*(i%4)}]\n"
                elif kind == 2 and i % 2 == 0:
                    s += f"    v_smfmac_f32_16x16x64_bf16 v[{16+4*((i//2)%4)}:{19+4*((i//2)%4)}], v[28:31], v[{r}:{r+7}], v12\n"
                if gap: s += f"    s_nop {gap}\n"
            for i in range(16):
                r = 32 + 64*g + 4*i
                s += f"    buffer_load_dwordx4 v[{r}:{r+3}], v2, s[8:11], s13 offen offset:{(i%4)*1024}\n"
                if i % 4 == 3: s += "    s_add_u32 s13, s13, 0x4000\n    s_and_b32 s13, s13, 0xfffff\n"
            if g == 0:
                s += "".join(f"    v_add_f32 v13, v14, v15\n" for _ in range(13))
    s += "    s_barrier\n"
    return s
def kernel(name, ncomp, bodyX, bodyY, iters, prioX, prioY, helper_first, nvgpr=168):
    thr = 0x4000 * ncomp
    cmp = f"    s_cmp_lt_u32 s22, 0x4000\n" if helper_first else f"    s_cmp_ge_u32 s22, {thr}\n"
    return f"""
.text
.globl {name}
.p2align 8
.type {name},@function
{name}:
    s_load_dwordx2 s[4:5], s[0:1], 0
    v_lshlrev_b32 v1, 4, v0
    s_lshl_b32 s3, s2, 14
    v_add_u32 v1, s3, v1
    v_and_b32 v2, 63, v0
    v_lshlrev_b32 v2, 4, v2
    v_lshrrev_b32 v3, 6, v0
    v_lshlrev_b32 v3, 12, v3
    v_add_u32 v9, v2, v3
    v_lshrrev_b32 v10, 2, v9
    v_lshrrev_b32 v11, 1, v9
    v_readfirstlane_b32 s22, v3
    v_and_b32 v3, 0x3000, v3
    v_add_u32 v2, v2, v3
    v_add_u32 v2, 0x800000, v2
    s_waitcnt lgkmcnt(0)
    s_mov_b32 s8, s4
    s_mov_b32 s9, s5
    s_mov_b32 s10, 0x1000000
    s_mov_b32 s11, 0x00020000
""" + "".join(f"    v_mov_b32 v{i}, 0x3c003c00\n" for i in range(12, nvgpr)) + f"""
    v_mov_b32 v12, 0xdddddddd
    s_mov_b32 s12, {iters}
    s_mov_b32 s13, 0
    s_barrier
    s_memtime s[14:15]
    s_memrealtime s[16:17]
    s_waitcnt lgkmcnt(0)
{cmp}
    s_cbranch_scc1 L_{name}_Y0
    s_setprio {prioX}
.p2align 6
L_{name}_X:
{bodyX}
    s_sub_u32 s12, s12, 1
    s_cmp_lg_u32 s12, 0
    s_cbranch_scc1 L_{name}_X
    s_branch L_{name}_end
L_{name}_Y0:
    s_setprio {prioY}
.p2align 6
L_{name}_Y:
{bodyY}
    s_sub_u32 s12, s12, 1
    s_cmp_lg_u32 s12, 0
    s_cbranch_scc1 L_{name}_Y
L_{name}_end:
    s_memtime s[18:19]
    s_memrealtime s[20:21]
    s_waitcnt lgkmcnt(0)
    s_sub_u32 s18, s18, s14
    s_subb_u32 s19, s19, s15
    s_sub_u32 s20, s20, s16
    s_subb_u32 s21, s21, s17
    v_mov_b32 v4, s18
    v_mov_b32 v5, s19
    v_mov_b32 v6, s20
    v_mov_b32 v7, s21
    buffer_store_dwordx4 v[4:7], v1, s[8:11], 0 offen
    s_waitcnt vmcnt(0)
    s_endpgm
.section .rodata,"a"
.p2align 6
.amdhsa_kernel {name}
  .amdhsa_next_free_vgpr {nvgpr}
  .amdhsa_next_free_sgpr 32
  .amdhsa_accum_offset {nvgpr}
  .amdhsa_group_segment_fixed_size 0
  .amdhsa_kernarg_size 8
  .amdhsa_user_sgpr_count 2
  .amdhsa_user_sgpr_kernarg_segment_ptr 1
  .amdhsa_system_sgpr_workgroup_id_x 1
.end_amdhsa_kernel
"""
out = '.amdgcn_target "amdgcn-amd-amdhsa--gfx950"\n'
names = []
for ncomp in (1, 2):
    for extras in (0, 1):
        for kind, gap in ((0,0),(1,0),(1,5),(2,0),(2,3)):
            for (px, py, hf) in ((0,0,0),(1,0,0),(0,1,0)):
                if kind == 0 and (px, py, hf) != (0,0,0): continue
                nm = f"rl_c{ncomp}_x{extras}_k{kind}_g{gap}_p{px}{py}_hf{hf}"
                names.append(nm)
                out += kernel(nm, ncomp, comp(16//ncomp, extras), helper(kind, gap), 200, px, py, hf)
out += meta(names, 168)
open("rl.s", "w").write(out)
open("rl_names.txt", "w").write("\n".join(names))
```

```python
from mb_gen import meta
import rl_gen
from rl_gen import mfma32, sm32, ex, kernel
def comp(ntiles, ins):
    s = ""
    for t in range(ntiles):
        Sa, Sb = (64, 80) if t % 2 == 0 else (80, 64)
        g = lambda p: ins.get((t, p), "")
        s += ex(Sa, 0, 4) + g(0) + sm32(112, 100, Sb+8) + ex(Sa, 4, 8) + g(1) + mfma32(Sb, 96, 104, "0") + ex(Sa, 8, 12) + g(2) + sm32(112, 96, Sa) + ex(Sa, 12, 16) + g(3)
    return s
V = {}
V["nobar"] = ({}, "    s_nop 0\n")
V["barmid"] = ({(3,0): "    s_barrier\n"}, "    s_barrier\n")
V["barmid_p1"] = ({(3,1): "    s_barrier\n"}, "    s_barrier\n")
V["barmid_p3"] = ({(3,3): "    s_barrier\n"}, "    s_barrier\n")
V["dsw3"] = ({(1,0): "    ds_write_b128 v9, v[128:131]\n", (1,1): "    ds_write_b128 v9, v[132:135] offset:1024\n", (1,2): "    ds_write_b32 v10, v136 offset:2048\n"}, "    s_nop 0\n")
V["dsw3adj"] = ({(1,0): "    ds_write_b128 v9, v[128:131]\n    ds_write_b128 v9, v[132:135] offset:1024\n    ds_write_b32 v10, v136 offset:2048\n"}, "    s_nop 0\n")
V["dsr1"] = ({(1,0): "    ds_read_b128 v[140:143], v9\n", (3,0): "    s_waitcnt lgkmcnt(0)\n"}, "    s_nop 0\n")
V["zero"] = ({(1,3): "    v_mfma_f32_32x32x8_bf16 v[128:143], v[96:97], v[96:97], 0\n"}, "    s_nop 0\n")
V["flag"] = ({(1,0): "    ds_read_b32 v140, v10\n", (3,0): "    s_waitcnt lgkmcnt(0)\n    v_readfirstlane_b32 s24, v140\n", (3,1): "    s_cmp_eq_u32 s24, 12345\n    s_cbranch_scc1 L_never\n"}, "    s_nop 0\n")
V["snop4"] = ({(1,0): "    s_nop 0\n", (2,0): "    s_nop 0\n",(3,0): "    s_nop 0\n",(4,0): "    s_nop 0\n"}, "    s_nop 0\n")
out = '.amdgcn_target "amdgcn-amd-amdhsa--gfx950"\n.text\nL_never:\n s_endpgm\n'
names = []
for ncomp in (1, 2):
    for n, (ins, hb) in V.items():
        nm = f"rl_c{ncomp}_{n}"
        names.append(nm)
        out += kernel(nm, ncomp, comp(16//ncomp, ins), hb, 200, 0, 1, 0)
out += meta(names, 168)
open("rl.s", "w").write(out)
open("rl_names.txt", "w").write("\n".join(names))
```

```python
import struct
NAME = "interleave_layers__grouped_kv_mqa__moe_arch_mod__prompt"

def f32(x):
    return "0x%08x" % struct.unpack("<I", struct.pack("<f", x))[0]

class Asm:
    def __init__(self):
        self.l = []
        self.uid = 0
    def __call__(self, s):
        for line in s.strip("\n").split("\n"):
            line = line.strip()
            if not line:
                continue
            if line.endswith(":") or line.startswith("."):
                self.l.append(line)
            else:
                self.l.append("    " + line)
    def label(self, base):
        self.uid += 1
        return f"L_{base}_{self.uid}"
    def text(self):
        return "\n".join(self.l) + "\n"

def vr(a, n):
    return f"v[{a}:{a+n-1}]" if n > 1 else f"v{a}"
def sr(a, n):
    return f"s[{a}:{a+n-1}]" if n > 1 else f"s{a}"

P_X, P_WQ, P_WK, P_WV, P_WO, P_BX, P_WR, P_WG = 16, 18, 20, 22, 24, 26, 28, 30
P_WU, P_WD, P_OUT, P_DBG = 32, 34, 36, 38
P_WS = 40

def load_kernargs(a):
    a("""
    s_load_dwordx16 s[16:31], s[0:1], 0
    s_load_dwordx8 s[32:39], s[0:1], 64
    s_load_dwordx2 s[40:41], s[0:1], 96
    """)

def srd(a, d, p, size):
    a(f"""
    s_mov_b32 s{d}, s{p}
    s_mov_b32 s{d+1}, s{p+1}
    s_mov_b32 s{d+2}, {hex(size)}
    s_mov_b32 s{d+3}, 0x00020000
    """)

def unpack8(a, dst, src):
    for i in range(4):
        a(f"v_lshlrev_b32 v{dst+2*i}, 16, v{src+i}")
        a(f"v_and_b32 v{dst+2*i+1}, 0xffff0000, v{src+i}")

def pack8(a, dst, src):
    for i in range(4):
        a(f"v_cvt_pk_bf16_f32 v{dst+i}, v{src+2*i}, v{src+2*i+1}")

DPP_STEPS = ["quad_perm:[1,0,3,2] row_mask:0xf bank_mask:0xf",
             "quad_perm:[2,3,0,1] row_mask:0xf bank_mask:0xf",
             "row_half_mirror row_mask:0xf bank_mask:0xf",
             "row_mirror row_mask:0xf bank_mask:0xf",
             "row_bcast:15 row_mask:0xa bank_mask:0xf",
             "row_bcast:31 row_mask:0xc bank_mask:0xf"]

def wave_reduce(a, regs, sdst, op="v_add_f32"):
    pad = max(0, 2 - (len(regs) - 1))
    a("s_nop 1")
    for st in DPP_STEPS:
        for r in regs:
            a(f"{op}_dpp v{r}, v{r}, v{r} {st}")
        if pad:
            a(f"s_nop {pad-1}")
    a("s_nop 0")
    for r, s in zip(regs, sdst):
        a(f"v_readlane_b32 s{s}, v{r}, 63")
    a("s_nop 1")

def ln_sums(a, X, ra, rb):
    a(f"v_add_f32 v{ra}, v{X}, v{X+1}")
    a(f"v_mul_f32 v{rb}, v{X}, v{X}")
    a(f"v_fmac_f32 v{rb}, v{X+1}, v{X+1}")
    for i in range(2, 8):
        a(f"v_add_f32 v{ra}, v{ra}, v{X+i}")
        a(f"v_fmac_f32 v{rb}, v{X+i}, v{X+i}")

def ln_apply(a, X, D, P, t, ssum, ssq):
    t0, t1, t2 = t, t+1, t+2
    a(f"""
    v_mov_b32 v{t0}, s{ssum}
    v_mov_b32 v{t1}, s{ssq}
    v_mul_f32 v{t0}, {f32(1/512)}, v{t0}
    v_mul_f32 v{t1}, {f32(1/512)}, v{t1}
    v_fma_f32 v{t1}, -v{t0}, v{t0}, v{t1}
    v_max_f32 v{t1}, 0, v{t1}
    v_cvt_pk_bf16_f32 v{t2}, v{t0}, v{t1}
    v_lshlrev_b32 v{t0}, 16, v{t2}
    v_and_b32 v{t1}, 0xffff0000, v{t2}
    v_add_f32 v{t1}, {f32(1e-5)}, v{t1}
    v_cvt_pk_bf16_f32 v{t2}, v{t1}, v{t1}
    v_lshlrev_b32 v{t1}, 16, v{t2}
    v_sqrt_f32 v{t1}, v{t1}
    """)
    for i in range(8):
        a(f"v_sub_f32 v{D+i}, v{X+i}, v{t0}")
    a(f"""
    v_cvt_pk_bf16_f32 v{t2}, v{t1}, v{t1}
    v_lshlrev_b32 v{t1}, 16, v{t2}
    v_rcp_f32 v{t1}, v{t1}
    """)
    pack8(a, P, D)
    unpack8(a, D, P)
    for i in range(8):
        a(f"v_mul_f32 v{D+i}, v{D+i}, v{t1}")
    pack8(a, P, D)

def kd(name, vgpr, sgpr=102):
    acc = (vgpr + 3) // 4 * 4
    return f""".section .rodata,"a"
.p2align 6
.amdhsa_kernel {name}
  .amdhsa_next_free_vgpr {vgpr}
  .amdhsa_next_free_sgpr {sgpr}
  .amdhsa_accum_offset {acc}
  .amdhsa_group_segment_fixed_size 0
  .amdhsa_kernarg_size 104
  .amdhsa_user_sgpr_count 2
  .amdhsa_user_sgpr_kernarg_segment_ptr 1
  .amdhsa_system_sgpr_workgroup_id_x 1
.end_amdhsa_kernel
"""

def kstart(name):
    return f""".text
.globl {name}
.p2align 8
.type {name},@function
{name}:
"""
```

```python
import sys
from common import *

WQF, WOF = 0x000000, 0x080000
KF = [0x100000, 0x120000]
VF = [0x110000, 0x130000]
CXN, CX, SCORE, HBUF = 0x140000, 0x180000, 0x1C0000, 0x1C1000
STAMP = 0x1E0000
WS_SIZE = 0x400000
ROWS_SIZE = 2048 * 1024
S_WS, S_IN, S_OUT, S_WKV, S_AUX, S_AUX2 = 44, 48, 52, 56, 60, 64
XP = 1056
QS = 1040
L_Q = 0
L_OFC = 10496
L_KEY = L_OFC + 64
L_BAD = L_KEY + 32
L_XN = 10752
L_XR = L_XN + 8 * XP
L_OF = L_XR + 8 * XP
OPW = 2304
OPB = 4 * OPW
L_OP = L_OF + 8 * XP
XOP = 2080
L_XO = L_OP
L_MX = L_OP + 9 * OPB
L_WKV = L_MX + 8192
L_END = L_WKV + 32768
assert L_XN % 16 == 0 and L_OP % 16 == 0 and L_WKV % 16 == 0
KSCALE = 0.25 * 1.4426950408889634

def lane_wave(a):
    a("""
    v_lshrrev_b32 v1, 6, v0
    s_nop 0
    v_readfirstlane_b32 s3, v1
    """)

def argmax_key(a, vt, sdst):
    a(f"""
    v_lshlrev_b32 v{vt+4}, 4, v0
    s_mov_b32 s4, {hex(SCORE)}
    buffer_load_dwordx4 {vr(vt,4)}, v{vt+4}, s[{S_WS}:{S_WS+3}], s4 offen
    s_waitcnt vmcnt(0)
    v_max3_u32 v{vt}, v{vt}, v{vt+1}, v{vt+2}
    v_max_u32 v{vt}, v{vt}, v{vt+3}
    """)
    wave_reduce(a, [vt], [sdst], op="v_max_u32")

def dma_linear(a, srd_, vaddr, slds, nkb, stmp):
    a(f"s_mov_b32 s{stmp}, 0")
    for q in range(nkb // 4):
        a(f"s_mov_b32 m0, s{slds}")
        a("s_nop 0")
        for i in range(4):
            a(f"buffer_load_dwordx4 v{vaddr}, s[{srd_}:{srd_+3}], s{stmp} offen offset:{i*1024} lds")
        if q != nkb // 4 - 1:
            a(f"s_add_u32 s{slds}, s{slds}, 4096")
            a(f"s_add_u32 s{stmp}, s{stmp}, 4096")

def tr_addr(a, dst, t, pitch_shift=5):
    a(f"""
    v_bfe_u32 v{dst}, v0, 2, 1
    v_bfe_u32 v{t}, v0, 3, 1
    v_lshl_add_u32 v{dst}, v{t}, 3, v{dst}
    v_bfe_u32 v{t}, v0, 4, 1
    v_lshl_add_u32 v{dst}, v{t}, 2, v{dst}
    v_bfe_u32 v{t}, v0, 5, 1
    v_lshl_add_u32 v{dst}, v{t}, 4, v{dst}
    v_lshlrev_b32 v{dst}, {pitch_shift}, v{dst}
    """)

def tr_reads(a, B, vaddr, nsteps, pitch=32):
    for s in range(nsteps):
        for p in range(2):
            for u in range(2):
                off = (64*s + 32*p + 2*u) * pitch
                a(f"ds_read_b64_tr_b16 {vr(B + 8*s + 4*p + 2*u, 2)}, v{vaddr} offset:{off}")

def afrag_addr(a, dst, t, base):
    a(f"""
    v_bfe_u32 v{dst}, v0, 1, 3
    v_mul_u32_u24 v{dst}, {XP}, v{dst}
    v_lshrrev_b32 v{t}, 4, v0
    v_lshl_add_u32 v{dst}, v{t}, 5, v{dst}
    v_and_b32 v{t}, 1, v0
    v_lshl_add_u32 v{dst}, v{t}, 4, v{dst}
    v_add_u32 v{dst}, {base}, v{dst}
    """)

def sparse_idx(a, dst, t):
    a(f"""
    v_and_b32 v{t}, 1, v0
    v_mul_u32_u24 v{dst}, 0xaaaa, v{t}
    v_add_u32 v{dst}, 0x4444, v{dst}
    """)

def kv_proj(a, layer_out, B, A, D, vA, vidx, sg):
    for s in range(8):
        a(f"ds_read_b128 {vr(A+4*s,4)}, v{vA} offset:{128*s}")
    for i in range(4):
        a(f"v_mov_b32 v{D+i}, 0")
    t = D + 4
    lk, ld = a.label("kvk"), a.label("kvd")
    for s in range(8):
        a(f"s_waitcnt lgkmcnt({7-s})")
        a(f"v_smfmac_f32_16x16x64_bf16 {vr(D,4)}, {vr(A+4*s,4)}, {vr(B+8*s,8)}, v{vidx}")
    a(f"""
    s_cmp_eq_u32 s3, 4
    s_cbranch_scc1 {lk}
    v_and_b32 v{t}, 15, v0
    v_lshlrev_b32 v{t}, 4, v{t}
    v_lshrrev_b32 v{t+1}, 4, v0
    v_lshl_add_u32 v{t}, v{t+1}, 2, v{t}
    s_lshl_b32 s4, s{sg}, 8
    s_add_u32 s4, s4, {hex(VF[layer_out])}
    s_nop 2
    v_add_f32 v{D}, v{D}, v{D+1}
    v_add_f32 v{D+2}, v{D+2}, v{D+3}
    v_cvt_pk_bf16_f32 v{D}, v{D}, v{D+2}
    buffer_store_dword v{D}, v{t}, s[{S_WS}:{S_WS+3}], s4 offen
    s_branch {ld}
    {lk}:
    v_bfe_u32 v{t}, v0, 3, 1
    v_lshlrev_b32 v{t}, 9, v{t}
    v_and_b32 v{t+1}, 7, v0
    v_lshl_add_u32 v{t}, v{t+1}, 1, v{t}
    v_lshrrev_b32 v{t+1}, 4, v0
    v_lshl_add_u32 v{t}, v{t+1}, 5, v{t}
    s_lshr_b32 s4, s{sg}, 2
    s_lshl_b32 s4, s4, 10
    s_and_b32 s5, s{sg}, 3
    s_lshl_b32 s5, s5, 7
    s_add_u32 s4, s4, s5
    s_add_u32 s4, s4, {hex(KF[layer_out])}
    v_add_f32 v{D}, v{D}, v{D+1}
    v_add_f32 v{D+2}, v{D+2}, v{D+3}
    v_mul_f32 v{D}, {f32(KSCALE)}, v{D}
    v_mul_f32 v{D+2}, {f32(KSCALE)}, v{D+2}
    v_cvt_pk_bf16_f32 v{D}, v{D}, v{D+2}
    buffer_store_short v{D}, v{t}, s[{S_WS}:{S_WS+3}], s4 offen
    buffer_store_short_d16_hi v{D}, v{t}, s[{S_WS}:{S_WS+3}], s4 offen offset:16
    {ld}:
    """)

def wkv_srd(a):
    a(f"""
    s_cmp_eq_u32 s3, 4
    s_cselect_b32 s{S_WKV}, s{P_WK}, s{P_WV}
    s_cselect_b32 s{S_WKV+1}, s{P_WK+1}, s{P_WV+1}
    s_mov_b32 s{S_WKV+2}, 0x4000
    s_mov_b32 s{S_WKV+3}, 0x00020000
    """)

def gen_prep(name, fix):
    a = Asm(); a.uid = 1000 if fix else 0
    end = a.label("end")
    a(f"s_cmp_ge_u32 s2, {1 if fix else 256}")
    a(f"s_cbranch_scc1 {end}")
    load_kernargs(a)
    lane_wave(a)
    a("v_mov_b32 v2, v0")
    a("v_and_b32 v0, 63, v0")
    a("v_lshlrev_b32 v3, 4, v0")
    a("s_waitcnt lgkmcnt(0)")
    srd(a, S_WS, P_WS, WS_SIZE)
    srd(a, S_IN, P_OUT if fix else P_X, ROWS_SIZE)
    wkv_srd(a)
    if fix:
        argmax_key(a, 8, 6)
        a("""
        s_and_b32 s6, s6, 0x7ff
        s_sub_u32 s6, 2047, s6
        s_lshr_b32 s2, s6, 3
        """)
    a(f"""
    s_lshl_b32 s4, s2, 3
    s_add_u32 s4, s4, s3
    s_lshl_b32 s4, s4, 10
    buffer_load_dwordx4 v[8:11], v3, s[{S_IN}:{S_IN+3}], s4 offen
    """)
    nrl = 0
    if not fix:
        a(f"""
        s_cmp_lt_u32 s2, 128
        s_cselect_b32 s{S_AUX}, s{P_WQ}, s{P_WO}
        s_cselect_b32 s{S_AUX+1}, s{P_WQ+1}, s{P_WO+1}
        s_mov_b32 s{S_AUX+2}, 0x80000
        s_mov_b32 s{S_AUX+3}, 0x00020000
        s_cselect_b32 s8, 14, 11
        s_bfe_u32 s9, s2, 0x30004
        s_and_b32 s10, s2, 15
        v_and_b32 v4, 0xc0, v2
        v_lshlrev_b32 v4, 8, v4
        v_bfe_u32 v5, v2, 5, 1
        v_lshl_add_u32 v4, v5, 12, v4
        v_and_b32 v5, 1, v2
        v_lshl_add_u32 v4, v5, 11, v4
        v_lshrrev_b32 v6, 8, v2
        v_lshl_add_u32 v4, v6, 5, v4
        v_and_b32 v5, 0x1e, v2
        v_add_u32 v4, v4, v5
        s_lshl_b32 s11, s9, 16
        s_lshl_b32 s12, s10, 6
        s_add_u32 s11, s11, s12
        s_add_u32 s12, s11, 8192
        buffer_load_ushort v40, v4, s[{S_AUX}:{S_AUX+3}], s11 offen
        buffer_load_ushort v41, v4, s[{S_AUX}:{S_AUX+3}], s11 offen offset:1024
        buffer_load_ushort v42, v4, s[{S_AUX}:{S_AUX+3}], s12 offen
        buffer_load_ushort v43, v4, s[{S_AUX}:{S_AUX+3}], s12 offen offset:1024
        v_lshlrev_b32 v6, s8, v6
        v_and_b32 v5, 255, v2
        v_lshl_add_u32 v6, v5, 3, v6
        s_lshl_b32 s13, s10, 15
        s_lshl_b32 s14, s9, 11
        s_add_u32 s13, s13, s14
        s_lshl_b32 s14, s9, 16
        s_lshl_b32 s15, s10, 12
        s_add_u32 s14, s14, s15
        s_add_u32 s14, s14, {hex(WOF)}
        s_cmp_lt_u32 s2, 128
        s_cselect_b32 s13, s13, s14
        """)
        nrl = 4
    nodma, j1 = a.label("nodma"), a.label("j1")
    a(f"""
    s_and_b32 s4, s3, 6
    s_cmp_eq_u32 s4, 4
    s_cbranch_scc0 {nodma}
    s_and_b32 s5, s3, 1
    s_lshl_b32 s5, s5, 14
    s_add_u32 s5, s5, {L_WKV}
    """)
    dma_linear(a, S_WKV, 3, 5, 16, 4)
    a(f"s_waitcnt vmcnt({16+nrl})")
    a(f"s_branch {j1}")
    a(f"{nodma}:")
    a(f"s_waitcnt vmcnt({nrl})")
    a(f"{j1}:")
    unpack8(a, 16, 8)
    ln_sums(a, 16, 12, 13)
    wave_reduce(a, [12, 13], [4, 5])
    ln_apply(a, 16, 24, 32, 12, 4, 5)
    a(f"""
    s_mul_i32 s4, s3, {XP}
    s_add_u32 s4, s4, {L_XN}
    v_add_u32 v7, s4, v3
    ds_write_b128 v7, v[32:35]
    s_waitcnt vmcnt(0)
    """)
    if not fix:
        a(f"""
        v_lshl_or_b32 v40, v41, 16, v40
        v_lshl_or_b32 v41, v43, 16, v42
        buffer_store_dwordx2 v[40:41], v6, s[{S_WS}:{S_WS+3}], s13 offen
        """)
    nokv = a.label("nokv")
    a(f"""
    s_and_b32 s4, s3, 6
    s_cmp_eq_u32 s4, 4
    s_cbranch_scc0 {nokv}
    """)
    tr_addr(a, 44, 45)
    a(f"""
    v_and_b32 v45, 3, v0
    v_lshl_add_u32 v44, v45, 3, v44
    s_and_b32 s5, s3, 1
    s_lshl_b32 s5, s5, 14
    s_add_u32 s5, s5, {L_WKV}
    v_add_u32 v44, s5, v44
    """)
    tr_reads(a, 64, 44, 8)
    afrag_addr(a, 46, 45, L_XN)
    sparse_idx(a, 47, 45)
    a("s_waitcnt lgkmcnt(0)")
    a("s_barrier")
    kv_proj(a, 1 if fix else 0, 64, 128, 48, 46, 47, 2)
    a("s_endpgm")
    a(f"{nokv}:")
    a("s_waitcnt lgkmcnt(0)")
    a("s_barrier")
    a(f"{end}:")
    a("s_endpgm")
    return kstart(name) + a.text() + kd(name, 160)

C_Z, C_IDX, C_OP16, C_OP4, C_QA, C_T = 0, 2, 3, 4, 5, 6
C_Q = [8, 12]
C_O = 16
C_S = [32, 48]
C_K = 64
C_V = 128
def qk(a, S, kt, Q):
    a(f"v_mfma_f32_32x32x16_bf16 {vr(S,16)}, {vr(C_K+4*kt,4)}, {vr(Q,4)}, 0")
def pv(a, vf, P):
    a(f"v_smfmac_f32_32x32x32_bf16 {vr(C_O,16)}, {vr(C_V+4*vf,4)}, {vr(P,8)}, v{C_IDX}")
def ex(a, S, lo, hi):
    for i in range(lo, hi):
        a(f"v_exp_f32 v{S+i}, v{S+i}")
def o_out(a, off):
    a(f"ds_write_b128 v{C_OP16}, {vr(C_O,4)} offset:{off}")
    a(f"ds_write_b128 v{C_OP16}, {vr(C_O+4,4)} offset:{off+1024}")
    a(f"ds_write_b32 v{C_OP4}, v{C_O+8} offset:{off}")
def o_zero(a):
    a(f"v_mfma_f32_32x32x8_bf16 {vr(C_O,16)}, v[0:1], v[0:1], 0")

def spin(a):
    a("s_sub_u32 s14, s14, 1")
    a(f"s_cbranch_scc1 {a.end}")

def q_fetch(a, Q, off):
    a(f"ds_read_b32 v{C_T}, v{C_QA} offset:{off+1024}")
    a(f"ds_read_b128 {vr(Q,4)}, v{C_QA} offset:{off}")

def compute_phase(a, par, waits):
    Q, Qn = C_Q[par], C_Q[par ^ 1]
    for t in range(16):
        Sa, Sb = C_S[t & 1], C_S[(t & 1) ^ 1]
        if waits and t in waits:
            a(f"s_waitcnt vmcnt({waits[t]})")
        if t == 1:
            pv(a, 0, Sb)
        ex(a, Sa, 0, 4)
        pv(a, (2*t - 1) % 32, Sb + 8)
        ex(a, Sa, 4, 8)
        if t == 15: qk(a, Sb, 0, Qn)
        else: qk(a, Sb, t + 1, Q)
        ex(a, Sa, 8, 12)
        if t == 0:
            o_out(a, par * OPB)
            o_zero(a)
        else:
            pv(a, 2*t, Sa)
        ex(a, Sa, 12, 16)
        if t == 8:
            q_fetch(a, Qn, (par + 1) * QS)
        if t == 10:
            retry, ok = a.label("qretry"), a.label("qok")
            a(f"""
            s_waitcnt lgkmcnt(0)
            v_readfirstlane_b32 s4, v{C_T}
            s_cmp_eq_u32 s4, 4
            s_cbranch_scc0 {retry}
            {ok}:
            """)
            a.deferred.append((retry, ok, Qn, (par + 1) * QS))

def emit_deferred(a):
    for retry, ok, Qn, off in a.deferred:
        a(f"{retry}:")
        spin(a)
        a("s_sleep 1")
        q_fetch(a, Qn, off)
        a(f"""
        s_waitcnt lgkmcnt(0)
        v_readfirstlane_b32 s4, v{C_T}
        s_cmp_eq_u32 s4, 4
        s_cbranch_scc0 {retry}
        s_branch {ok}
        """)
    a.deferred = []

H_LANE16, H_IDX, H_AXN, H_AOF, H_QW, H_NRD, H_NPOLL, H_NWR, H_ZERO, H_ONE, H_HI, H_LO, H_TR = 1, 2, 3, 4, 5, 6, 7, 8, 10, 9, 12, 13, 14
H_T = 16
H_XNF = 32
H_ACC = 64
H_QD = 96
H_OA = 100
H_BQ = 128
H_BO = 192

def h_loads(a, buf, soff_expr_sgpr):
    s = soff_expr_sgpr
    for q in range(4):
        for i in range(4):
            a(f"buffer_load_dwordx4 {vr(buf + 16*q + 4*i, 4)}, v{H_LANE16}, s[{S_WS}:{S_WS+3}], s{s} offen offset:{1024*i}")
        if q != 3:
            a(f"s_add_u32 s{s}, s{s}, 4096")

def h_wq_loads(a, buf, b):
    a(f"s_add_u32 s4, s8, {hex(WQF + b*65536)}")
    h_loads(a, buf, 4)
def h_wo_loads(a, buf, b):
    a(f"s_add_u32 s4, s8, {hex(WOF + b*65536)}")
    h_loads(a, buf, 4)

def h_qjob(a, buf, b, vm):
    a(f"v_mfma_f32_16x16x16_bf16 {vr(H_QD,4)}, {vr(H_ZERO,2)}, {vr(H_ZERO,2)}, 0")
    a(f"s_waitcnt vmcnt({vm})")
    a("s_nop 4")
    for s in range(8):
        a(f"v_smfmac_f32_16x16x64_bf16 {vr(H_QD,4)}, {vr(H_XNF+4*s,4)}, {vr(buf+8*s,8)}, v{H_IDX}")
    a(f"""
    s_nop 7
    v_add_f32 v{H_QD}, v{H_QD}, v{H_QD+1}
    v_add_f32 v{H_QD+2}, v{H_QD+2}, v{H_QD+3}
    v_cvt_pk_bf16_f32 v{H_QD}, v{H_QD}, v{H_QD+2}
    ds_write_b16 v{H_QW}, v{H_QD} offset:{b*QS}
    ds_write_b16_d16_hi v{H_QW}, v{H_QD} offset:{b*QS+16}
    s_mov_b64 exec, 1
    ds_add_u32 v{H_ZERO}, v{H_ONE} offset:{L_Q + b*QS + 1024}
    s_mov_b64 exec, -1
    """)

def h_njob(a, b, sleep):
    p = a.label("npoll")
    T = H_T
    a(f"{p}:")
    spin(a)
    a(f"""
    s_sleep {sleep}
    ds_read_b32 v{T+8}, v{H_NPOLL}
    s_waitcnt lgkmcnt(0)
    v_cmp_eq_f32 vcc, -1.0, v{T+8}
    s_cbranch_vccnz {p}
    """)
    for w in range(4):
        a(f"ds_read_b64 {vr(T+2*w,2)}, v{H_NRD} offset:{w*OPW}")
    a(f"""
    v_add_f32_dpp v{T+8}, v{T+8}, v{T+8} quad_perm:[1,0,3,2] row_mask:0xf bank_mask:0xf
    v_add_u32 v{H_NRD}, {OPB}, v{H_NRD}
    v_add_u32 v{H_NPOLL}, {OPB}, v{H_NPOLL}
    v_add_f32_dpp v{T+8}, v{T+8}, v{T+8} quad_perm:[2,3,0,1] row_mask:0xf bank_mask:0xf
    s_nop 0
    v_rcp_f32 v{T+9}, v{T+8}
    v_min_f32 v{H_LO}, v{H_LO}, v{T+8}
    s_waitcnt lgkmcnt(2)
    v_add_f32 v{T}, v{T}, v{T+2}
    v_add_f32 v{T+1}, v{T+1}, v{T+3}
    s_waitcnt lgkmcnt(0)
    v_add_f32 v{T+4}, v{T+4}, v{T+6}
    v_add_f32 v{T+5}, v{T+5}, v{T+7}
    v_add_f32 v{T}, v{T}, v{T+4}
    v_add_f32 v{T+1}, v{T+1}, v{T+5}
    v_maximum3_f32 v{T+8}, |v{T}|, |v{T+1}|, v{T+8}
    v_mul_f32 v{T}, v{T}, v{T+9}
    v_mul_f32 v{T+1}, v{T+1}, v{T+9}
    v_maximum3_f32 v{H_HI}, v{H_HI}, v{T+8}, v{T+8}
    v_cvt_pk_bf16_f32 v{T}, v{T}, v{T+1}
    ds_write_b32 v{H_NWR}, v{T} offset:{b*128}
    s_mov_b64 exec, 1
    ds_add_u32 v{H_ZERO}, v{H_ONE} offset:{L_OFC + 4*b}
    s_mov_b64 exec, -1
    """)

def h_ojob(a, buf, b, vm):
    p = a.label("opoll")
    T = H_T
    a(f"{p}:")
    spin(a)
    a(f"""
    ds_read_b32 v{T}, v{H_ZERO} offset:{L_OFC + 4*b}
    ds_read_b128 {vr(H_OA,4)}, v{H_AOF} offset:{128*b}
    s_waitcnt lgkmcnt(0)
    v_cmp_ne_u32 vcc, 4, v{T}
    s_cbranch_vccnz {p}
    s_waitcnt vmcnt({vm})
    """)
    for j in range(8):
        a(f"v_smfmac_f32_16x16x64_bf16 {vr(H_ACC+4*j,4)}, {vr(H_OA,4)}, {vr(buf+8*j,8)}, v{H_IDX}")

def h_init_flags(a, with_q):
    T = H_T
    a(f"v_mov_b32 v{T}, -1.0")
    a(f"v_add_u32 v{T+1}, {4*OPB}, v{H_NPOLL}")
    for b in range(4):
        a(f"ds_write_b32 v{H_NPOLL}, v{T} offset:{b*OPB}")
        a(f"ds_write_b32 v{T+1}, v{T} offset:{b*OPB}")
    a(f"""
    v_lshlrev_b32 v{T+2}, 2, v0
    s_mov_b64 exec, 0xff
    ds_write_b32 v{T+2}, v{H_ZERO} offset:{L_OFC}
    """)
    if with_q:
        a(f"""
        v_mul_u32_u24 v{T+2}, {QS}, v0
        ds_write_b32 v{T+2}, v{H_ZERO} offset:{L_Q + 1024}
        v_mov_b32 v{T+3}, 4
        ds_write_b32 v{H_ZERO}, v{T+3} offset:{L_Q + 8*QS + 1024}
        ds_write_b32 v{H_ZERO}, v{H_ZERO} offset:{L_BAD}
        """)
    a("s_mov_b64 exec, -1")

def h_naddr(a):
    T = H_T
    a(f"""
    v_lshrrev_b32 v{T}, 3, v0
    s_lshl_b32 s4, s9, 3
    v_add_u32 v{T+1}, s4, v{T}
    v_bfe_u32 v{T+2}, v0, 2, 1
    v_lshlrev_b32 v{H_NRD}, 10, v{T+2}
    v_bfe_u32 v{T+2}, v0, 1, 1
    v_lshl_add_u32 v{H_NRD}, v{T+2}, 9, v{H_NRD}
    v_lshl_add_u32 v{H_NRD}, v{T+1}, 4, v{H_NRD}
    v_and_b32 v{T+2}, 1, v0
    v_lshl_add_u32 v{H_NRD}, v{T+2}, 3, v{H_NRD}
    v_add_u32 v{H_NRD}, {L_OP + OPB}, v{H_NRD}
    v_and_b32 v{T+2}, 3, v0
    v_mul_u32_u24 v{H_NPOLL}, {OPW}, v{T+2}
    v_lshl_add_u32 v{H_NPOLL}, v{T+1}, 2, v{H_NPOLL}
    v_add_u32 v{H_NPOLL}, {L_OP + OPB + 2048}, v{H_NPOLL}
    """)

def h_finish(a, slow):
    T = H_T
    a(f"""
    v_lshrrev_b32 v{T}, 4, v0
    v_mul_u32_u24 v{T}, {2*XOP}, v{T}
    v_and_b32 v{T+1}, 15, v0
    v_lshl_add_u32 v{T}, v{T+1}, 2, v{T}
    s_lshl_b32 s4, s9, 9
    s_add_u32 s4, s4, {L_XO}
    v_add_u32 v{T}, s4, v{T}
    """)
    if not slow:
        a(f"""
        v_mov_b32 v{T+2}, {f32(2.0**60)}
        v_mov_b32 v{T+3}, {f32(2.0**-20)}
        v_cmp_nle_f32 vcc, v{H_HI}, v{T+2}
        v_cmp_nge_f32 s[4:5], v{H_LO}, v{T+3}
        s_or_b64 vcc, vcc, s[4:5]
        s_and_b64 exec, exec, vcc
        ds_write_b32 v{H_ZERO}, v{H_ONE} offset:{L_BAD}
        s_mov_b64 exec, -1
        """)
    else:
        a("s_nop 7")
    for j in range(8):
        A = H_ACC + 4*j
        a(f"v_add_f32 v{A}, v{A}, v{A+1}")
        a(f"v_add_f32 v{A+2}, v{A+2}, v{A+3}")
        a(f"ds_write_b32 v{T}, v{A} offset:{64*j}")
        a(f"ds_write_b32 v{T}, v{A+2} offset:{64*j + XOP}")
    a("s_waitcnt lgkmcnt(0)")

def gen_attn(name, layer, force_slow=False):
    a = Asm(); a.uid = 2000 + 1000 * layer; a.deferred = []
    end, helper, epi, slow = a.label("end"), a.label("helper"), a.label("epi"), a.label("slow")
    a("s_cmp_ge_u32 s2, 256")
    a(f"s_cbranch_scc1 {end}")
    load_kernargs(a)
    lane_wave(a)
    a("v_and_b32 v0, 63, v0")
    a("v_lshlrev_b32 v1, 4, v0")
    a("s_mov_b32 s7, 0")
    a("s_mov_b32 s14, 0x40000")
    a.end = end
    a("s_waitcnt lgkmcnt(0)")
    srd(a, S_WS, P_WS, WS_SIZE)
    srd(a, S_IN, P_OUT if layer else P_X, ROWS_SIZE)
    srd(a, S_OUT, P_OUT, ROWS_SIZE)
    srd(a, S_AUX, P_WR, 1024)
    wkv_srd(a)
    a(f"""
    s_lshl_b32 s6, s2, 3
    s_add_u32 s6, s6, s3
    s_lshl_b32 s4, s6, 10
    buffer_load_dwordx4 v[16:19], v1, s[{S_IN}:{S_IN+3}], s4 offen
    s_cmp_ge_u32 s3, 4
    s_cbranch_scc1 {helper}
    """)
    def prologue_ln(vm):
        a(f"s_waitcnt vmcnt({vm})")
        unpack8(a, 32, 16)
        ln_sums(a, 32, 20, 21)
        wave_reduce(a, [20, 21], [4, 5])
        ln_apply(a, 32, 40, 24, 20, 4, 5)
        a(f"""
        s_mul_i32 s4, s3, {XP}
        v_add_u32 v20, s4, v1
        ds_write_b128 v20, v[24:27] offset:{L_XN}
        ds_write_b128 v20, v[16:19] offset:{L_XR}
        """)
    a(f"""
    s_lshl_b32 s8, s3, 14
    s_add_u32 s9, s8, {hex(VF[layer])}
    s_add_u32 s8, s8, {hex(KF[layer])}
    v_and_b32 v2, 15, v0
    v_lshlrev_b32 v2, 4, v2
    v_lshrrev_b32 v3, 5, v0
    v_lshl_add_u32 v2, v3, 8, v2
    s_mov_b32 s10, 0xffff
    s_mov_b32 s11, 0xffff
    """)
    for t in range(16):
        a(f"buffer_load_dwordx4 {vr(C_K+4*t,4)}, v1, s[{S_WS}:{S_WS+3}], s8 offen offset:{1024*(t%4)}")
        a("s_mov_b64 exec, s[10:11]")
        a(f"buffer_load_dwordx4 {vr(C_V+8*t,4)}, v2, s[{S_WS}:{S_WS+3}], s9 offen offset:{1024*(t%4)}")
        a(f"buffer_load_dwordx4 {vr(C_V+8*t+4,4)}, v2, s[{S_WS}:{S_WS+3}], s9 offen offset:{1024*(t%4)+512}")
        a("s_mov_b64 exec, -1")
        if t % 4 == 3 and t != 15:
            a("s_add_u32 s8, s8, 4096")
            a("s_add_u32 s9, s9, 4096")
    prologue_ln(48)
    a("s_waitcnt lgkmcnt(0)")
    a("s_barrier")
    a("s_not_b64 exec, s[10:11]")
    for i in range(128):
        a(f"v_mov_b32 v{C_V+i}, 0x3f803f80")
    a("s_mov_b64 exec, -1")
    a(f"""
    s_mul_i32 s4, s3, {OPW}
    s_add_u32 s4, s4, {L_OP}
    v_add_u32 v{C_OP16}, s4, v1
    v_lshlrev_b32 v{C_OP4}, 2, v0
    s_add_u32 s4, s4, 2048
    v_add_u32 v{C_OP4}, s4, v{C_OP4}
    v_mov_b32 v{C_QA}, v1
    v_mov_b32 v7, v0
    v_mov_b32 v{C_IDX}, 0xdddd
    v_mov_b32 v0, 0
    v_mov_b32 v1, 0
    """)
    w0 = a.label("q0wait")
    a(f"{w0}:")
    spin(a)
    q_fetch(a, C_Q[0], 0)
    a(f"""
    s_waitcnt lgkmcnt(0)
    v_readfirstlane_b32 s4, v{C_T}
    s_cmp_eq_u32 s4, 4
    s_cbranch_scc0 {w0}
    s_waitcnt vmcnt(47)
    """)
    qk(a, C_S[0], 0, C_Q[0])
    a("s_mov_b32 s12, 4")
    a("s_nop 10")
    loop = a.label("cloop")
    a(".p2align 6")
    a(f"{loop}:")
    waits = {}
    for t0 in (0, 2, 4, 7, 10, 13):
        nxt = {0: 2, 2: 4, 4: 7, 7: 10, 10: 13, 13: 16}[t0]
        need = min(3 * nxt + 1, 48)
        waits[t0] = 48 - need
    compute_phase(a, 0, waits)
    compute_phase(a, 1, None)
    a(f"""
    v_add_u32 v{C_OP16}, {2*OPB}, v{C_OP16}
    v_add_u32 v{C_OP4}, {2*OPB}, v{C_OP4}
    v_add_u32 v{C_QA}, {2*QS}, v{C_QA}
    s_sub_u32 s12, s12, 1
    s_cmp_lg_u32 s12, 0
    s_cbranch_scc1 {loop}
    """)
    pv(a, 31, C_S[1] + 8)
    a("s_nop 15")
    o_out(a, 0)
    a("v_mov_b32 v0, v7")
    a("s_waitcnt lgkmcnt(0)")
    a(f"s_branch {epi}")
    emit_deferred(a)
    a(f"{helper}:")
    a(f"""
    s_setprio 2
    s_sub_u32 s9, s3, 4
    s_lshl_b32 s8, s9, 14
    """)
    h_wq_loads(a, H_BQ, 0)
    h_wq_loads(a, H_BO, 1)
    prologue_ln(32)
    T = H_T
    a(f"v_mov_b32 v{H_ZERO}, 0")
    a(f"v_mov_b32 v{H_ZERO+1}, 0")
    a(f"v_mov_b32 v{H_ONE}, 1")
    h_naddr(a)
    h_init_flags(a, True)
    sparse_idx(a, H_IDX, T)
    afrag_addr(a, H_AXN, T, L_XN)
    a(f"""
    v_add_u32 v{H_AOF}, {L_OF - L_XN}, v{H_AXN}
    v_bfe_u32 v{H_QW}, v0, 3, 1
    v_lshlrev_b32 v{H_QW}, 9, v{H_QW}
    v_and_b32 v{T}, 7, v0
    v_lshl_add_u32 v{H_QW}, v{T}, 1, v{H_QW}
    v_lshrrev_b32 v{T}, 4, v0
    v_lshl_add_u32 v{H_QW}, v{T}, 5, v{H_QW}
    s_lshl_b32 s4, s9, 7
    v_add_u32 v{H_QW}, s4, v{H_QW}
    v_lshrrev_b32 v{T}, 3, v0
    v_mul_u32_u24 v{H_NWR}, {XP}, v{T}
    v_and_b32 v{T}, 7, v0
    v_lshl_add_u32 v{H_NWR}, v{T}, 2, v{H_NWR}
    s_lshl_b32 s4, s9, 5
    s_add_u32 s4, s4, {L_OF}
    v_add_u32 v{H_NWR}, s4, v{H_NWR}
    v_mov_b32 v{H_HI}, {'0x7f800000' if force_slow else 0}
    v_mov_b32 v{H_LO}, 1.0
    s_waitcnt lgkmcnt(0)
    s_barrier
    """)
    for s in range(8):
        a(f"ds_read_b128 {vr(H_XNF+4*s,4)}, v{H_AXN} offset:{128*s}")
    for i in range(32):
        a(f"v_mov_b32 v{H_ACC+i}, 0")
    a("s_waitcnt lgkmcnt(0)")
    h_qjob(a, H_BQ, 0, 16)
    h_wq_loads(a, H_BQ, 2)
    h_qjob(a, H_BO, 1, 16)
    h_wo_loads(a, H_BO, 0)
    for b in range(8):
        if b + 2 < 8:
            h_qjob(a, H_BQ, b + 2, 16)
            if b + 3 < 8:
                h_wq_loads(a, H_BQ, b + 3)
                vm = 16
            else:
                vm = 0
        else:
            vm = 0
        if b == 6 and layer == 0:
            sk = a.label("skipkv")
            a(f"""
            s_cmp_ge_u32 s9, 2
            s_cbranch_scc1 {sk}
            s_lshl_b32 s5, s9, 14
            s_add_u32 s5, s5, {L_WKV}
            """)
            tr_addr(a, H_TR, T)
            a(f"""
            v_and_b32 v{T}, 3, v0
            v_lshl_add_u32 v{H_TR}, v{T}, 3, v{H_TR}
            v_add_u32 v{H_TR}, s5, v{H_TR}
            """)
            dma_linear(a, S_WKV, H_LANE16, 5, 16, 4)
            a("s_waitcnt vmcnt(0)")
            tr_reads(a, H_BQ, H_TR, 8)
            a("s_waitcnt lgkmcnt(0)")
            a(f"{sk}:")
        h_njob(a, b, 4 if b < 7 else 0)
        h_ojob(a, H_BO, b, vm)
        if b + 1 < 8:
            h_wo_loads(a, H_BO, b + 1)
    h_finish(a, False)
    a(f"{epi}:")
    a(f"""
    v_lshlrev_b32 v16, 4, v0
    buffer_load_dwordx4 v[60:63], v16, s[{S_AUX}:{S_AUX+3}], 0 offen
    s_mul_i32 s4, s3, {XOP}
    v_lshlrev_b32 v17, 5, v0
    v_add_u32 v17, s4, v17
    s_mul_i32 s4, s3, {XP}
    v_add_u32 v18, s4, v16
    v_mov_b32 v19, 0
    s_barrier
    ds_read_b32 v19, v19 offset:{L_BAD}
    ds_read_b128 v[32:35], v17 offset:{L_XO}
    ds_read_b128 v[36:39], v17 offset:{L_XO+16}
    ds_read_b128 v[20:23], v18 offset:{L_XR}
    s_waitcnt lgkmcnt(3)
    v_readfirstlane_b32 s4, v19
    s_cmp_gt_u32 s4, s7
    s_cbranch_scc1 {slow}
    s_waitcnt lgkmcnt(0)
    """)
    pack8(a, 24, 32)
    unpack8(a, 32, 24)
    unpack8(a, 40, 20)
    for i in range(8):
        a(f"v_add_f32 v{32+i}, v{32+i}, v{40+i}")
    pack8(a, 20, 32)
    unpack8(a, 32, 20)
    ln_sums(a, 32, 28, 29)
    wave_reduce(a, [28, 29], [4, 5])
    ln_apply(a, 32, 40, 24, 28, 4, 5)
    unpack8(a, 40, 24)
    a("s_waitcnt vmcnt(0)")
    unpack8(a, 48, 60)
    a("v_mul_f32 v30, v40, v48")
    for i in range(1, 8):
        a(f"v_fmac_f32 v30, v{40+i}, v{48+i}")
    for i in range(8):
        a(f"v_add_f32 v{32+i}, v{32+i}, v{40+i}")
    pack8(a, 56, 32)
    a(f"""
    s_lshl_b32 s4, s6, 10
    buffer_store_dwordx4 v[56:59], v16, s[{S_OUT}:{S_OUT+3}], s4 offen
    """)
    if layer == 0:
        unpack8(a, 32, 56)
        ln_sums(a, 32, 28, 29)
        wave_reduce(a, [28, 29, 30], [4, 5, 13])
        ln_apply(a, 32, 40, 48, 52, 4, 5)
        a(f"ds_write_b128 v18, v[48:51] offset:{L_XN}")
    else:
        wave_reduce(a, [30], [13])
    a(f"""
    v_mov_b32 v30, s13
    v_cvt_pk_bf16_f32 v30, v30, v30
    v_ashrrev_i32 v31, 31, v30
    v_or_b32 v31, 0x80000000, v31
    v_xor_b32 v30, v30, v31
    v_and_b32 v30, 0xffff0000, v30
    s_sub_u32 s4, 2047, s6
    v_or_b32 v30, s4, v30
    s_lshl_b32 s4, s3, 2
    v_mov_b32 v31, s4
    ds_write_b32 v31, v30 offset:{L_KEY}
    v_and_b32 v31, 7, v0
    v_lshlrev_b32 v31, 2, v31
    s_waitcnt lgkmcnt(0)
    s_barrier
    ds_read_b32 v31, v31 offset:{L_KEY}
    s_waitcnt lgkmcnt(0)
    v_cmp_gt_u32 vcc, v31, v30
    """)
    nb = a.label("notbest")
    a(f"""
    s_cbranch_vccnz {nb}
    s_lshl_b32 s4, s2, 10
    s_add_u32 s5, s4, {hex(CX)}
    s_add_u32 s4, s4, {hex(CXN)}
    buffer_store_dwordx4 v[24:27], v16, s[{S_WS}:{S_WS+3}], s4 offen
    buffer_store_dwordx4 v[20:23], v16, s[{S_WS}:{S_WS+3}], s5 offen
    s_lshl_b32 s4, s2, 2
    s_add_u32 s4, s4, {hex(SCORE)}
    s_mov_b64 exec, 1
    buffer_store_dword v30, off, s[{S_WS}:{S_WS+3}], s4
    s_mov_b64 exec, -1
    {nb}:
    """)
    if layer == 0:
        a(f"""
        s_and_b32 s4, s3, 6
        s_cmp_eq_u32 s4, 4
        s_cbranch_scc0 {end}
        """)
        kv_proj(a, 1, H_BQ, H_XNF, H_QD, H_AXN, H_IDX, 2)
    a(f"{end}:")
    a("s_endpgm")
    hs = a.label("hslow")
    a(f"""
    {slow}:
    s_mov_b32 s7, 1
    s_waitcnt vmcnt(0) lgkmcnt(0)
    s_barrier
    s_cmp_ge_u32 s3, 4
    s_cbranch_scc1 {hs}
    v_lshlrev_b32 v{C_QA}, 4, v0
    v_lshlrev_b32 v{C_OP4}, 2, v0
    s_lshl_b32 s4, s3, 8
    s_add_u32 s4, s4, {L_MX}
    v_add_u32 v{C_OP16}, s4, v{C_OP4}
    s_mov_b32 s12, 8
    """)
    l1 = a.label("mx")
    a(f"{l1}:")
    a(f"ds_read_b128 {vr(C_Q[0],4)}, v{C_QA}")
    a(f"v_mov_b32 v{C_T}, 0xff800000")
    a("s_waitcnt lgkmcnt(0)")
    for t in range(16):
        qk(a, C_S[0], t, C_Q[0])
        a("s_nop 15")
        for i in range(8):
            a(f"v_max3_f32 v{C_T}, v{C_S[0]+2*i}, v{C_S[0]+2*i+1}, v{C_T}")
    a(f"""
    ds_write_b32 v{C_OP16}, v{C_T}
    v_add_u32 v{C_OP16}, 1024, v{C_OP16}
    v_add_u32 v{C_QA}, {QS}, v{C_QA}
    s_sub_u32 s12, s12, 1
    s_cmp_lg_u32 s12, 0
    s_cbranch_scc1 {l1}
    s_waitcnt lgkmcnt(0)
    s_barrier
    v_lshlrev_b32 v{C_QA}, 4, v0
    s_mul_i32 s4, s3, {OPW}
    s_add_u32 s4, s4, {L_OP + OPB}
    v_add_u32 v{C_OP16}, s4, v{C_QA}
    s_add_u32 s4, s4, 2048
    v_add_u32 v{C_OP4}, s4, v{C_OP4}
    v_and_b32 v1, 31, v0
    v_lshlrev_b32 v1, 2, v1
    v_add_u32 v1, {L_MX}, v1
    s_mov_b32 s12, 8
    """)
    l2 = a.label("sl")
    a(f"{l2}:")
    a(f"ds_read_b128 {vr(C_Q[0],4)}, v{C_QA}")
    for i in range(8):
        a(f"ds_read_b32 v{C_S[1]+i}, v1 offset:{128*i}")
    for i in range(16):
        a(f"v_mov_b32 v{C_O+i}, 0")
    a("s_waitcnt lgkmcnt(0)")
    a(f"""
    v_max3_f32 v{C_T}, v{C_S[1]}, v{C_S[1]+1}, v{C_S[1]+2}
    v_max3_f32 v{C_T}, v{C_S[1]+3}, v{C_S[1]+4}, v{C_T}
    v_max3_f32 v{C_T}, v{C_S[1]+5}, v{C_S[1]+6}, v{C_T}
    v_max_f32 v{C_T}, v{C_S[1]+7}, v{C_T}
    """)
    for t in range(16):
        qk(a, C_S[0], t, C_Q[0])
        a("s_nop 15")
        for i in range(16):
            a(f"v_sub_f32 v{C_S[0]+i}, v{C_S[0]+i}, v{C_T}")
        ex(a, C_S[0], 0, 16)
        a("s_nop 1")
        pv(a, 2*t, C_S[0])
        pv(a, 2*t+1, C_S[0]+8)
    a("s_nop 15")
    o_out(a, 0)
    a(f"""
    v_add_u32 v{C_OP16}, {OPB}, v{C_OP16}
    v_add_u32 v{C_OP4}, {OPB}, v{C_OP4}
    v_add_u32 v{C_QA}, {QS}, v{C_QA}
    v_add_u32 v1, 1024, v1
    s_waitcnt lgkmcnt(0)
    s_sub_u32 s12, s12, 1
    s_cmp_lg_u32 s12, 0
    s_cbranch_scc1 {l2}
    s_branch {epi}
    {hs}:
    """)
    h_naddr(a)
    h_init_flags(a, False)
    for i in range(32):
        a(f"v_mov_b32 v{H_ACC+i}, 0")
    a("s_waitcnt lgkmcnt(0)")
    a("s_barrier")
    for b in range(8):
        h_wo_loads(a, H_BO, b)
        h_njob(a, b, 4)
        h_ojob(a, H_BO, b, 0)
    h_finish(a, True)
    a(f"s_branch {epi}")
    return kstart(name) + a.text() + kd(name, 256)

def gen_ffn1(name):
    a = Asm(); a.uid = 5000
    end = a.label("end")
    a("s_cmp_ge_u32 s2, 224")
    a(f"s_cbranch_scc1 {end}")
    load_kernargs(a)
    lane_wave(a)
    a("v_and_b32 v0, 63, v0")
    a("s_waitcnt lgkmcnt(0)")
    srd(a, S_WS, P_WS, WS_SIZE)
    a(f"""
    s_cmp_lt_u32 s3, 2
    s_cselect_b32 s{S_AUX}, s{P_WG}, s{P_WU}
    s_cselect_b32 s{S_AUX+1}, s{P_WG+1}, s{P_WU+1}
    s_mov_b32 s{S_AUX+2}, {512*3584}
    s_mov_b32 s{S_AUX+3}, 0x00020000
    v_mul_u32_u24 v1, 3584, v0
    s_and_b32 s4, s3, 1
    s_mul_i32 s4, s4, {256*3584}
    s_lshl_b32 s5, s2, 4
    s_add_u32 s4, s4, s5
    s_lshl_b32 s5, s3, 12
    """)
    for i in range(4):
        a("s_mov_b32 m0, s5")
        a("s_nop 0")
        a(f"buffer_load_dwordx4 v1, s[{S_AUX}:{S_AUX+3}], s4 offen lds")
        a(f"s_add_u32 s4, s4, {64*3584}")
        a("s_add_u32 s5, s5, 1024")
    w = a.label("w")
    a("s_cmp_lg_u32 s3, 0")
    a(f"s_cbranch_scc1 {w}")
    argmax_key(a, 8, 6)
    a(f"""
    s_and_b32 s4, s6, 0x7ff
    s_sub_u32 s4, 2047, s4
    s_lshr_b32 s4, s4, 3
    s_lshl_b32 s4, s4, 10
    s_add_u32 s4, s4, {hex(CXN)}
    v_lshrrev_b32 v2, 4, v0
    v_lshlrev_b32 v2, 5, v2
    v_and_b32 v3, 1, v0
    v_lshl_add_u32 v2, v3, 4, v2
    """)
    for s in range(8):
        a(f"buffer_load_dwordx4 {vr(32+4*s,4)}, v2, s[{S_WS}:{S_WS+3}], s4 offen offset:{128*s}")
    tr_addr(a, 4, 5, 4)
    a(f"""
    v_and_b32 v5, 1, v0
    v_lshl_add_u32 v4, v5, 3, v4
    v_bfe_u32 v5, v0, 1, 1
    v_lshl_add_u32 v4, v5, 13, v4
    """)
    sparse_idx(a, 6, 5)
    for i in range(4):
        a(f"v_mov_b32 v{16+i}, 0")
    a("s_barrier")
    tr_reads(a, 64, 4, 8, pitch=16)
    a("s_waitcnt vmcnt(0) lgkmcnt(0)")
    for s in range(8):
        a(f"v_smfmac_f32_16x16x64_bf16 v[16:19], {vr(32+4*s,4)}, {vr(64+8*s,8)}, v6")
    a(f"""
    s_nop 7
    v_add_f32 v16, v16, v17
    v_cvt_pk_bf16_f32 v16, v16, v16
    v_lshlrev_b32 v16, 16, v16
    s_nop 1
    v_mov_b32_dpp v17, v16 row_ror:8 row_mask:0xf bank_mask:0xf
    v_mul_f32 v18, {f32(-1.4426950408889634)}, v16
    v_exp_f32 v18, v18
    s_nop 0
    v_add_f32 v18, 1.0, v18
    v_rcp_f32 v18, v18
    s_nop 0
    v_mul_f32 v18, v16, v18
    v_cvt_pk_bf16_f32 v18, v18, v18
    v_lshlrev_b32 v18, 16, v18
    v_mul_f32 v18, v18, v17
    v_cvt_pk_bf16_f32 v18, v18, v18
    v_lshlrev_b32 v19, 1, v0
    s_lshl_b32 s4, s2, 4
    s_add_u32 s4, s4, {hex(HBUF)}
    s_mov_b64 exec, 0xff
    buffer_store_short v18, v19, s[{S_WS}:{S_WS+3}], s4 offen
    s_endpgm
    {w}:
    s_waitcnt vmcnt(0)
    s_barrier
    {end}:
    s_endpgm
    """)
    return kstart(name) + a.text() + kd(name, 128)

def gen_ffn2(name):
    a = Asm(); a.uid = 6000
    end = a.label("end")
    a("s_cmp_ge_u32 s2, 32")
    a(f"s_cbranch_scc1 {end}")
    load_kernargs(a)
    lane_wave(a)
    a("v_and_b32 v0, 63, v0")
    a("s_waitcnt lgkmcnt(0)")
    srd(a, S_WS, P_WS, WS_SIZE)
    srd(a, S_AUX, P_WD, 1792*1024)
    srd(a, S_OUT, P_OUT, ROWS_SIZE)
    a(f"""
    v_lshrrev_b32 v1, 1, v0
    v_lshlrev_b32 v1, 10, v1
    v_and_b32 v2, 1, v0
    v_lshl_add_u32 v1, v2, 4, v1
    s_lshl_b32 s4, s3, 18
    s_lshl_b32 s5, s2, 5
    s_add_u32 s4, s4, s5
    s_lshl_b32 s5, s3, 13
    s_mov_b32 s8, s5
    """)
    for i in range(8):
        a("s_mov_b32 m0, s5")
        a("s_nop 0")
        a(f"buffer_load_dwordx4 v1, s[{S_AUX}:{S_AUX+3}], s4 offen lds")
        a(f"s_add_u32 s4, s4, {32*1024}")
        a("s_add_u32 s5, s5, 1024")
    a(f"""
    v_lshrrev_b32 v3, 4, v0
    v_lshlrev_b32 v3, 5, v3
    v_lshl_add_u32 v3, v2, 4, v3
    s_lshl_b32 s4, s3, 9
    s_add_u32 s4, s4, {hex(HBUF)}
    """)
    for s in range(4):
        a(f"buffer_load_dwordx4 {vr(32+4*s,4)}, v3, s[{S_WS}:{S_WS+3}], s4 offen offset:{128*s}")
    tr_addr(a, 4, 5)
    a(f"""
    v_and_b32 v5, 3, v0
    v_lshl_add_u32 v4, v5, 3, v4
    v_add_u32 v4, s8, v4
    """)
    sparse_idx(a, 6, 5)
    for i in range(4):
        a(f"v_mov_b32 v{16+i}, 0")
    argmax_key(a, 8, 6)
    a(f"""
    s_and_b32 s9, s6, 0x7ff
    s_sub_u32 s9, 2047, s9
    s_lshr_b32 s4, s9, 3
    s_lshl_b32 s4, s4, 10
    s_lshl_b32 s5, s2, 5
    s_add_u32 s4, s4, s5
    s_add_u32 s10, s4, {hex(CX)}
    s_add_u32 s4, s4, {hex(CXN)}
    v_and_b32 v7, 15, v0
    v_lshlrev_b32 v7, 1, v7
    buffer_load_ushort v20, v7, s[{S_WS}:{S_WS+3}], s4 offen
    buffer_load_ushort v21, v7, s[{S_WS}:{S_WS+3}], s10 offen
    """)
    tr_reads(a, 64, 4, 4)
    a("s_waitcnt lgkmcnt(0)")
    for s in range(4):
        a(f"v_smfmac_f32_16x16x64_bf16 v[16:19], {vr(32+4*s,4)}, {vr(64+8*s,8)}, v6")
    LP = 7 * 8192
    a(f"""
    s_lshl_b32 s4, s3, 8
    v_lshlrev_b32 v8, 2, v0
    v_add_u32 v9, s4, v8
    s_nop 5
    v_add_f32 v16, v16, v17
    ds_write_b32 v9, v16 offset:{LP}
    s_waitcnt lgkmcnt(0)
    s_barrier
    s_cmp_lg_u32 s3, 0
    s_cbranch_scc1 {end}
    """)
    for i in range(7):
        a(f"ds_read_b32 v{24+i}, v8 offset:{LP + 256*i}")
    a(f"""
    s_and_b32 s4, s6, 0xffff0000
    s_ashr_i32 s5, s4, 31
    s_not_b32 s5, s5
    s_or_b32 s5, s5, 0x80000000
    s_xor_b32 s4, s4, s5
    s_and_b32 s4, s4, 0xffff0000
    v_mov_b32 v10, s4
    v_mul_f32 v10, {f32(-1.4426950408889634)}, v10
    v_exp_f32 v10, v10
    s_nop 0
    v_add_f32 v10, 1.0, v10
    v_rcp_f32 v10, v10
    s_nop 0
    v_cvt_pk_bf16_f32 v10, v10, v10
    v_lshlrev_b32 v10, 16, v10
    s_waitcnt vmcnt(0) lgkmcnt(0)
    """)
    for i in range(1, 7):
        a(f"v_add_f32 v24, v24, v{24+i}")
    a(f"""
    v_cvt_pk_bf16_f32 v24, v24, v24
    v_lshlrev_b32 v24, 16, v24
    v_mul_f32 v24, v24, v10
    v_cvt_pk_bf16_f32 v24, v24, v24
    v_lshlrev_b32 v24, 16, v24
    v_lshlrev_b32 v20, 16, v20
    v_lshlrev_b32 v21, 16, v21
    v_add_f32 v24, v24, v20
    v_cvt_pk_bf16_f32 v24, v24, v24
    v_lshlrev_b32 v24, 16, v24
    v_add_f32 v24, v24, v21
    v_cvt_pk_bf16_f32 v24, v24, v24
    s_lshl_b32 s4, s9, 10
    s_lshl_b32 s5, s2, 5
    s_add_u32 s4, s4, s5
    s_mov_b64 exec, 0xffff
    buffer_store_short v24, v7, s[{S_OUT}:{S_OUT+3}], s4 offen
    {end}:
    s_endpgm
    """)
    return kstart(name) + a.text() + kd(name, 128)

def gen_nop(name):
    return kstart(name) + "    s_endpgm\n" + kd(name, 8)

def build(force_slow=False, extra_nops=0):
    hdr = open("cdna_kernels/" + NAME + ".s.ref").read().split("; Override launch")[0]
    L = [("prep_kernel", 256, 512, L_END), ("attn0_kernel", 256, 512, L_END), ("ffn1_kernel", 224, 256, 16384),
         ("ffn2_kernel", 32, 448, 7*8192 + 2048), ("fix_kernel", 1, 512, L_END), ("attn1_kernel", 256, 512, L_END),
         ("ffn1_kernel", 224, 256, 16384), ("ffn2_kernel", 32, 448, 7*8192 + 2048)]
    L += [("nop_kernel", 256, 256, 0)] * extra_nops
    s = hdr
    for k, g, b, lds in L:
        s += f"; @launch kernel={k} grid=({g},1,1) block=({b},1,1) lds={lds}\n"
    s += '.amdgcn_target "amdgcn-amd-amdhsa--gfx950"\n'
    s += gen_prep("prep_kernel", False) + gen_prep("fix_kernel", True)
    s += gen_attn("attn0_kernel", 0, force_slow) + gen_attn("attn1_kernel", 1, force_slow)
    s += gen_ffn1("ffn1_kernel") + gen_ffn2("ffn2_kernel")
    if extra_nops: s += gen_nop("nop_kernel")
    return s

if __name__ == "__main__":
    out = sys.argv[1] if len(sys.argv) > 1 else "cdna_kernels/" + NAME + ".s"
    fs = "--slow" in sys.argv
    nn = 0
    for x in sys.argv:
        if x.startswith("--nops="): nn = int(x[7:])
    open(out, "w").write(build(fs, nn))
    print("L_END", L_END)
```

```python
import sys
from common import *

WQF, WOF = 0x000000, 0x080000
KF0 = 0x100000
CAND = 0x140000
SYNC = 0x240000
A_FLAG1, A_KEY, A_H, A_Y, A_FLAG0 = SYNC, SYNC + 0x4000, SYNC + 0xC000, SYNC + 0x14000, SYNC + 0x20000
STAMP = 0x280000
WS_SIZE = 0x400000
ROWS_SIZE = 2048 * 1024
S_WS, S_X, S_OUT, S_WKV, S_WR, S_FF, S_RL, S_DBG = 44, 48, 52, 56, 60, 64, 68, 72
WS = f"s[{S_WS}:{S_WS+3}]"
SG, SW, STOK, SSLOW, SBUD, SLAY, SKEY, SCH, SISB, SONES = 2, 3, 6, 7, 14, 15, 42, 43, 96, 95
XP = 1056
QS = 1040
L_Q = 0
L_OFC = 10496
L_KEY = L_OFC + 32
L_BAD = L_KEY + 32
L_PUB = L_BAD + 4
L_SYN = L_BAD + 8
L_IDX = L_BAD + 12
L_PCN = L_BAD + 16
L_KVX = L_BAD + 64
L_PART = 10752
L_XF = L_PART + 512
L_XN = L_XF + 2048
L_XR = L_XN + 8 * XP
L_OF = L_XR + 8 * XP
OPW = 2304
OPB = 4 * OPW
L_OP = L_OF + 8 * XP
XOP = 2080
L_XO = L_OP + 7 * OPB
L_MX = L_XN
L_WKV = L_OP + 9 * OPB
L_END = L_WKV + 32768
assert L_XN % 16 == 0 and L_OP % 16 == 0 and L_WKV % 16 == 0 and L_KVX % 16 == 0 and L_KVX + 64 <= L_PART
assert L_END <= 163840
KSCALE = 0.25 * 1.4426950408889634
LOG2E = 1.4426950408889634

STAMPS = False
BUDGET = 0x40000
def stamp(a, i, cyc=False):
    if not STAMPS: return
    a(f"""
    {'s_memtime' if cyc else 's_memrealtime'} s[92:93]
    s_waitcnt lgkmcnt(0)
    s_mov_b32 s{76+i}, s92
    """)
def stamp_layer(a):
    if not STAMPS: return
    for i in range(16):
        a(f"s_mov_b32 s{16+i}, s{76+i}")
def stamp_flush(a):
    if not STAMPS: return
    stamp(a, 15)
    a(f"""
    s_mov_b64 exec, 1
    s_lshl_b32 s92, s{SG}, 10
    s_lshl_b32 s93, s{SW}, 7
    s_add_u32 s92, s92, s93
    s_add_u32 s92, s92, {hex(STAMP)}
    """)
    for i in range(32):
        a(f"v_mov_b32 v1, s{16+i if i < 16 else 76+i-16}")
        a(f"buffer_store_dword v1, off, {WS}, s92 offset:{4*i}")

def spin(a):
    a(f"s_sub_u32 s{SBUD}, s{SBUD}, 1")
    a(f"s_cbranch_scc1 {a.end}")

def reduce_fill(a, regs, sdst, fill=(), op="v_add_f32", lead=2):
    fill = list(fill)
    def pad(n):
        while n > 0 and fill:
            a(fill.pop(0)); n -= 1
        if n > 0: a(f"s_nop {n-1}")
    pad(lead)
    need = max(0, 2 - (len(regs) - 1))
    for st in DPP_STEPS:
        for r in regs:
            a(f"{op}_dpp v{r}, v{r}, v{r} {st}")
        pad(need)
    if need == 0 and len(regs) < 2: pad(1)
    for r, s in zip(regs, sdst):
        a(f"v_readlane_b32 s{s}, v{r}, 63")
    pad(2)
    for f in fill: a(f)

def L(fn, *args):
    t = Asm(); fn(t, *args); return [x.strip() for x in t.l]

def ln_dots(a, P, ra, rb):
    for i in range(4):
        a(f"v_dot2_f32_bf16 v{ra}, v{P+i}, s{SONES}, {'0' if i == 0 else 'v%d' % ra}")
        a(f"v_dot2_f32_bf16 v{rb}, v{P+i}, v{P+i}, {'0' if i == 0 else 'v%d' % rb}")

def ln_scale(a, t, ssum, ssq):
    m, v, p = t + 2, t, t + 1
    a(f"""
    v_mov_b32 v{m}, s{ssum}
    v_mov_b32 v{v}, s{ssq}
    v_mul_f32 v{m}, {f32(1/512)}, v{m}
    v_mul_f32 v{v}, {f32(1/512)}, v{v}
    v_fma_f32 v{v}, -v{m}, v{m}, v{v}
    v_max_f32 v{v}, 0, v{v}
    v_cvt_pk_bf16_f32 v{p}, v{m}, v{v}
    v_and_b32 v{v}, 0xffff0000, v{p}
    v_add_f32 v{v}, {f32(1e-5)}, v{v}
    v_cvt_pk_bf16_f32 v{v}, v{v}, v{v}
    v_lshlrev_b32 v{v}, 16, v{v}
    v_sqrt_f32 v{v}, v{v}
    v_lshlrev_b32 v{m}, 16, v{p}
    v_cvt_pk_bf16_f32 v{v}, v{v}, v{v}
    v_lshlrev_b32 v{v}, 16, v{v}
    v_rcp_f32 v{v}, v{v}
    s_nop 0
    v_mul_f32 v{m}, -v{m}, v{v}
    """)

def ln_apply2(a, X, D, P, t):
    for i in range(4):
        a(f"v_pk_fma_f32 {vr(D+2*i,2)}, {vr(X+2*i,2)}, {vr(t,2)}, {vr(t+2,2)} op_sel_hi:[1,0,0]")
    pack8(a, P, D)

def pk_add8(a, D, A, B):
    for i in range(4):
        a(f"v_pk_add_f32 {vr(D+2*i,2)}, {vr(A+2*i,2)}, {vr(B+2*i,2)}")

def ln_row(a, P, X, D, O, t):
    ln_dots(a, P, t + 4, t + 5)
    reduce_fill(a, [t + 4, t + 5], [4, 5], L(unpack8, X, P), lead=3)
    ln_scale(a, t, 4, 5)
    ln_apply2(a, X, D, O, t)

def tr_addr(a, dst, t, pitch_shift=5):
    a(f"""
    v_bfe_u32 v{dst}, v0, 2, 1
    v_bfe_u32 v{t}, v0, 3, 1
    v_lshl_add_u32 v{dst}, v{t}, 3, v{dst}
    v_bfe_u32 v{t}, v0, 4, 1
    v_lshl_add_u32 v{dst}, v{t}, 2, v{dst}
    v_bfe_u32 v{t}, v0, 5, 1
    v_lshl_add_u32 v{dst}, v{t}, 4, v{dst}
    v_lshlrev_b32 v{dst}, {pitch_shift}, v{dst}
    """)

def tr_reads(a, B, vaddr, nsteps, pitch=32):
    for s in range(nsteps):
        for p in range(2):
            for u in range(2):
                off = (64*s + 32*p + 2*u) * pitch
                a(f"ds_read_b64_tr_b16 {vr(B + 8*s + 4*p + 2*u, 2)}, v{vaddr} offset:{off}")

def chunk_addr(a, dst, t, shift):
    a(f"""
    v_lshrrev_b32 v{dst}, 4, v0
    v_and_b32 v{t}, 1, v0
    v_lshl_add_u32 v{dst}, v{dst}, 1, v{t}
    v_lshlrev_b32 v{dst}, {shift}, v{dst}
    """)

def sparse_idx(a, dst, t):
    a(f"""
    v_and_b32 v{t}, 1, v0
    v_mul_u32_u24 v{dst}, 0xaaaa, v{t}
    v_add_u32 v{dst}, 0x4444, v{dst}
    """)

def sm16(a, D, A, B, idx):
    a(f"v_smfmac_f32_16x16x64_bf16 {vr(D,4)}, {vr(A,4)}, {vr(B,8)}, v{idx}")

C_IDX, C_OP16, C_OP4, C_QA, C_T = 2, 3, 4, 5, 6
C_Q = [8, 12]
C_O = 16
C_S = [32, 48]
C_K = 64
C_V = 128
def qk(a, S, kt, Q):
    a(f"v_mfma_f32_32x32x16_bf16 {vr(S,16)}, {vr(C_K+4*kt,4)}, {vr(Q,4)}, 0")
def pv(a, vf, P):
    a(f"v_smfmac_f32_32x32x32_bf16 {vr(C_O,16)}, {vr(C_V+4*vf,4)}, {vr(P,8)}, v{C_IDX}")
def ex(a, S, lo, hi):
    for i in range(lo, hi):
        a(f"v_exp_f32 v{S+i}, v{S+i}")
def o_out(a, off):
    a(f"ds_write_b128 v{C_OP16}, {vr(C_O,4)} offset:{off}")
    a(f"ds_write_b128 v{C_OP16}, {vr(C_O+4,4)} offset:{off+1024}")
    a(f"ds_write_b32 v{C_OP4}, v{C_O+8} offset:{off}")
def o_zero(a):
    a(f"v_mfma_f32_32x32x8_bf16 {vr(C_O,16)}, v[0:1], v[0:1], 0")
def q_fetch(a, Q, off):
    a(f"ds_read_b32 v{C_T}, v{C_QA} offset:{off+1024}")
    a(f"ds_read_b128 {vr(Q,4)}, v{C_QA} offset:{off}")

def compute_phase(a, par, first=False):
    Q, Qn = C_Q[par], C_Q[par ^ 1]
    for t in range(16):
        Sa, Sb = C_S[t & 1], C_S[(t & 1) ^ 1]
        if first:
            a(f"s_waitcnt vmcnt({max(0, 32 - (2*t + 3))})")
            for j in range(4):
                a(f"v_permlane16_swap_b32 v{C_V+8*t+j}, v{C_V+8*t+4+j}")
        if t == 1:
            pv(a, 0, Sb)
        ex(a, Sa, 0, 4)
        if not (first and t == 0):
            pv(a, (2*t - 1) % 32, Sb + 8)
        ex(a, Sa, 4, 8)
        if t == 15: qk(a, Sb, 0, Qn)
        else: qk(a, Sb, t + 1, Q)
        ex(a, Sa, 8, 12)
        if t == 0:
            if not first: o_out(a, par * OPB)
            o_zero(a)
        else:
            pv(a, 2*t, Sa)
        ex(a, Sa, 12, 16)
        if t == 8:
            q_fetch(a, Qn, (par + 1) * QS)
        if t == 10:
            retry, ok = a.label("qretry"), a.label("qok")
            a(f"""
            s_waitcnt lgkmcnt(0)
            v_readfirstlane_b32 s4, v{C_T}
            s_cmp_eq_u32 s4, 4
            s_cbranch_scc0 {retry}
            {ok}:
            """)
            a.deferred.append((retry, ok, Qn, (par + 1) * QS))

def emit_deferred(a):
    for retry, ok, Qn, off in a.deferred:
        a(f"{retry}:")
        spin(a)
        a("s_sleep 1")
        q_fetch(a, Qn, off)
        a(f"""
        s_waitcnt lgkmcnt(0)
        v_readfirstlane_b32 s4, v{C_T}
        s_cmp_eq_u32 s4, 4
        s_cbranch_scc0 {retry}
        s_branch {ok}
        """)
    a.deferred = []

H_LANE16, H_IDX, H_AXN, H_AOF, H_QW, H_NRD, H_NPOLL, H_NWR, H_ONE, H_ZERO, H_HI, H_LO, H_TR, H_FV = 1, 2, 3, 4, 5, 6, 7, 8, 9, 10, 12, 13, 14, 15
H_T = 16
H_QD = 28
H_OA = 28
H_XNF = 32
H_ACC = 64
H_KB = 64
H_BQ = 128
H_BO = 192

def h_loads(a, buf, base):
    a(f"s_add_u32 s4, s8, {hex(base)}")
    for q in range(4):
        for i in range(4):
            a(f"buffer_load_dwordx4 {vr(buf + 16*q + 4*i, 4)}, v{H_LANE16}, {WS}, s4 offen offset:{1024*i} sc1")
        if q != 3:
            a("s_add_u32 s4, s4, 4096")
def h_wq_loads(a, buf, b): h_loads(a, buf, WQF + b*65536)
def h_wo_loads(a, buf, b): h_loads(a, buf, WOF + b*65536)

def lds_inc(a, off):
    a(f"""
    s_mov_b64 exec, 1
    ds_add_u32 v{H_ZERO}, v{H_ONE} offset:{off}
    s_mov_b64 exec, -1
    """)

def h_qjob(a, buf, b, vm):
    a(f"v_mfma_f32_16x16x16_bf16 {vr(H_QD,4)}, {vr(H_ZERO,2)}, {vr(H_ZERO,2)}, 0")
    a(f"s_waitcnt vmcnt({vm})")
    a("s_nop 4")
    for s in range(8):
        sm16(a, H_QD, H_XNF+4*s, buf+8*s, H_IDX)
    a(f"""
    s_nop 7
    v_add_f32 v{H_QD}, v{H_QD}, v{H_QD+1}
    v_add_f32 v{H_QD+2}, v{H_QD+2}, v{H_QD+3}
    v_cvt_pk_bf16_f32 v{H_QD}, v{H_QD}, v{H_QD+2}
    ds_write_b16 v{H_QW}, v{H_QD} offset:{b*QS}
    ds_write_b16_d16_hi v{H_QW}, v{H_QD} offset:{b*QS+16}
    """)
    lds_inc(a, L_Q + b*QS + 1024)

def h_njob(a, b, sleep):
    p = a.label("npoll")
    T = H_T
    a(f"{p}:")
    spin(a)
    a(f"""
    s_sleep {sleep}
    ds_read_b32 v{T+8}, v{H_NPOLL}
    s_waitcnt lgkmcnt(0)
    v_cmp_eq_f32 vcc, -1.0, v{T+8}
    s_cbranch_vccnz {p}
    """)
    for w in range(4):
        a(f"ds_read_b64 {vr(T+2*w,2)}, v{H_NRD} offset:{w*OPW}")
    a(f"""
    v_add_f32_dpp v{T+8}, v{T+8}, v{T+8} quad_perm:[1,0,3,2] row_mask:0xf bank_mask:0xf
    v_add_u32 v{H_NRD}, {OPB}, v{H_NRD}
    v_add_u32 v{H_NPOLL}, {OPB}, v{H_NPOLL}
    v_add_f32_dpp v{T+8}, v{T+8}, v{T+8} quad_perm:[2,3,0,1] row_mask:0xf bank_mask:0xf
    s_nop 0
    v_rcp_f32 v{T+9}, v{T+8}
    v_min_f32 v{H_LO}, v{H_LO}, v{T+8}
    s_waitcnt lgkmcnt(2)
    v_add_f32 v{T}, v{T}, v{T+2}
    v_add_f32 v{T+1}, v{T+1}, v{T+3}
    s_waitcnt lgkmcnt(0)
    v_add_f32 v{T+4}, v{T+4}, v{T+6}
    v_add_f32 v{T+5}, v{T+5}, v{T+7}
    v_add_f32 v{T}, v{T}, v{T+4}
    v_add_f32 v{T+1}, v{T+1}, v{T+5}
    v_maximum3_f32 v{T+8}, |v{T}|, |v{T+1}|, v{T+8}
    v_mul_f32 v{T}, v{T}, v{T+9}
    v_mul_f32 v{T+1}, v{T+1}, v{T+9}
    v_maximum3_f32 v{H_HI}, v{H_HI}, v{T+8}, v{T+8}
    v_cvt_pk_bf16_f32 v{T}, v{T}, v{T+1}
    ds_write_b32 v{H_NWR}, v{T} offset:{b*128}
    """)
    lds_inc(a, L_OFC + 4*b)

def h_ojob(a, buf, b, vm):
    p = a.label("opoll")
    T = H_T
    a(f"{p}:")
    spin(a)
    a(f"""
    ds_read_b32 v{T}, v{H_ZERO} offset:{L_OFC + 4*b}
    ds_read_b128 {vr(H_OA,4)}, v{H_AOF} offset:{128*b}
    s_waitcnt lgkmcnt(0)
    v_cmp_ne_u32 vcc, 4, v{T}
    s_cbranch_vccnz {p}
    s_waitcnt vmcnt({vm})
    """)
    for j in range(8):
        sm16(a, H_ACC+4*j, H_OA, buf+8*j, H_IDX)

def h_sentinels(a):
    T = H_T
    a(f"""
    v_lshrrev_b32 v{T}, 3, v0
    s_lshl_b32 s4, s9, 3
    v_add_u32 v{T+1}, s4, v{T}
    v_bfe_u32 v{T+2}, v0, 2, 1
    v_lshlrev_b32 v{H_NRD}, 10, v{T+2}
    v_bfe_u32 v{T+2}, v0, 1, 1
    v_lshl_add_u32 v{H_NRD}, v{T+2}, 9, v{H_NRD}
    v_lshl_add_u32 v{H_NRD}, v{T+1}, 4, v{H_NRD}
    v_and_b32 v{T+2}, 1, v0
    v_lshl_add_u32 v{H_NRD}, v{T+2}, 3, v{H_NRD}
    v_add_u32 v{H_NRD}, {L_OP + OPB}, v{H_NRD}
    v_and_b32 v{T+2}, 3, v0
    v_mul_u32_u24 v{H_NPOLL}, {OPW}, v{T+2}
    v_lshl_add_u32 v{H_NPOLL}, v{T+1}, 2, v{H_NPOLL}
    v_add_u32 v{H_NPOLL}, {L_OP + OPB + 2048}, v{H_NPOLL}
    v_mov_b32 v{T}, -1.0
    v_add_u32 v{T+1}, {4*OPB}, v{H_NPOLL}
    """)
    for b in range(4):
        a(f"ds_write_b32 v{H_NPOLL}, v{T} offset:{b*OPB}")
        a(f"ds_write_b32 v{T+1}, v{T} offset:{b*OPB}")

def reset_counters(a, t, with_q=True, extra=()):
    a(f"""
    v_mov_b32 v{t}, 0
    v_lshlrev_b32 v{t+1}, 2, v0
    v_mul_u32_u24 v{t+2}, {QS}, v0
    s_mov_b64 exec, 0xff
    ds_write_b32 v{t+1}, v{t} offset:{L_OFC}
    """)
    if with_q:
        a(f"ds_write_b32 v{t+2}, v{t} offset:{L_Q + 1024}")
    for off in extra:
        a(f"ds_write_b32 v{t}, v{t} offset:{off}")
    a("s_mov_b64 exec, -1")

def h_stage_ffn(a):
    lp = a.label("stage")
    a(f"""
    s_mov_b32 s4, s98
    s_mov_b32 s5, s100
    s_mov_b32 s10, s101
    {lp}:
    s_mov_b32 m0, s5
    s_add_u32 s5, s5, 1024
    buffer_load_dwordx4 v{H_FV}, s[{S_FF}:{S_FF+3}], s4 offen lds
    s_add_u32 s4, s4, s99
    s_sub_u32 s10, s10, 1
    s_cmp_lg_u32 s10, 0
    s_cbranch_scc1 {lp}
    """)

def h_finish(a, slow):
    T = H_T
    a(f"""
    v_lshrrev_b32 v{T}, 4, v0
    v_mul_u32_u24 v{T}, {2*XOP}, v{T}
    v_and_b32 v{T+1}, 15, v0
    v_lshl_add_u32 v{T}, v{T+1}, 2, v{T}
    s_lshl_b32 s4, s9, 9
    s_add_u32 s4, s4, {L_XO}
    v_add_u32 v{T}, s4, v{T}
    """)
    if not slow:
        a(f"""
        v_mov_b32 v{T+2}, {f32(2.0**60)}
        v_mov_b32 v{T+3}, {f32(2.0**-20)}
        v_cmp_nle_f32 vcc, v{H_HI}, v{T+2}
        v_cmp_nge_f32 s[4:5], v{H_LO}, v{T+3}
        s_or_b64 vcc, vcc, s[4:5]
        s_and_b64 exec, exec, vcc
        ds_write_b32 v{H_ZERO}, v{H_ONE} offset:{L_BAD}
        s_mov_b64 exec, -1
        """)
    else:
        a("s_nop 7")
    for j in range(8):
        A = H_ACC + 4*j
        a(f"v_add_f32 v{A}, v{A}, v{A+1}")
        a(f"v_add_f32 v{A+2}, v{A+2}, v{A+3}")
        a(f"ds_write_b32 v{T}, v{A} offset:{64*j}")
        a(f"ds_write_b32 v{T}, v{A+2} offset:{64*j + XOP}")

def kv_mm(a, vA):
    D = H_QD
    for s in range(8):
        a(f"ds_read_b128 {vr(H_XNF+4*s,4)}, v{vA} offset:{128*s}")
    for i in range(4):
        a(f"v_mov_b32 v{D+i}, 0")
    a(f"""
    s_cmp_eq_u32 s{SW}, 4
    s_cselect_b32 s10, {f32(KSCALE)}, 1.0
    """)
    for s in range(8):
        a(f"s_waitcnt lgkmcnt({7-s})")
        sm16(a, D, H_XNF+4*s, H_KB+8*s, H_IDX)
    a(f"""
    s_nop 7
    v_add_f32 v{D}, v{D}, v{D+1}
    v_add_f32 v{D+2}, v{D+2}, v{D+3}
    v_mul_f32 v{D}, s10, v{D}
    v_mul_f32 v{D+2}, s10, v{D+2}
    """)

def kv_store(a, layer_out):
    D, t = H_QD, H_T
    lk, ld = a.label("kvk"), a.label("kvd")
    base = KF0 + layer_out * 0x20000
    a(f"""
    s_cmp_eq_u32 s{SW}, 4
    s_cbranch_scc1 {lk}
    v_and_b32 v{t}, 15, v0
    v_lshlrev_b32 v{t}, 4, v{t}
    v_lshrrev_b32 v{t+1}, 4, v0
    v_lshl_add_u32 v{t}, v{t+1}, 2, v{t}
    s_lshl_b32 s4, s{SG}, 8
    s_add_u32 s4, s4, {hex(base + 0x10000)}
    v_cvt_pk_bf16_f32 v{D}, v{D}, v{D+2}
    s_branch {ld}
    {lk}:
    v_and_b32 v{t+2}, 1, v0
    v_cmp_eq_u32 vcc, 1, v{t+2}
    v_bfe_u32 v{t}, v0, 3, 1
    v_lshlrev_b32 v{t}, 9, v{t}
    v_cndmask_b32 v{D+1}, v{D+2}, v{D}, vcc
    v_and_b32 v{t+1}, 6, v0
    v_lshl_add_u32 v{t}, v{t+1}, 1, v{t}
    v_mov_b32_dpp v{D+3}, v{D+1} quad_perm:[1,0,3,2] row_mask:0xf bank_mask:0xf
    v_lshrrev_b32 v{t+1}, 4, v0
    v_lshl_add_u32 v{t}, v{t+1}, 5, v{t}
    v_lshl_add_u32 v{t}, v{t+2}, 4, v{t}
    v_cndmask_b32 v{D}, v{D}, v{D+3}, vcc
    v_cndmask_b32 v{D+2}, v{D+3}, v{D+2}, vcc
    s_lshr_b32 s4, s{SG}, 2
    s_lshl_b32 s4, s4, 10
    s_and_b32 s5, s{SG}, 3
    s_lshl_b32 s5, s5, 7
    s_add_u32 s4, s4, s5
    s_add_u32 s4, s4, {hex(base)}
    v_cvt_pk_bf16_f32 v{D}, v{D}, v{D+2}
    {ld}:
    buffer_store_dword v{D}, v{t}, {WS}, s4 offen sc1
    """)

def wait_init(a, t):
    p = a.label("winit")
    a(f"{p}:")
    spin(a)
    a(f"""
    buffer_load_dword v{t}, off, s[{S_DBG}:{S_DBG+3}], 0 sc1
    s_waitcnt vmcnt(0)
    v_cmp_eq_u32 vcc, 0, v{t}
    s_cbranch_vccnz {p}
    """)

def publish(a, t, last, arr, need_init):
    sk = a.label("npub")
    a(f"""
    v_mov_b32 v{t}, 0
    v_mov_b32 v{t+1}, 1
    s_waitcnt vmcnt(0)
    s_mov_b64 exec, 1
    ds_add_rtn_u32 v{t+2}, v{t}, v{t+1} offset:{L_PUB}
    s_waitcnt lgkmcnt(0)
    v_readfirstlane_b32 s4, v{t+2}
    s_cmp_lg_u32 s4, {last}
    s_cbranch_scc1 {sk}
    """)
    if need_init: wait_init(a, t + 2)
    a(f"""
    s_lshl_b32 s4, s{SG}, 6
    s_add_u32 s4, s4, {hex(arr)}
    buffer_store_dword v{t+1}, off, {WS}, s4 sc1
    {sk}:
    s_mov_b64 exec, -1
    """)

def pack_pairs(a, d, t):
    a(f"""
    s_nop 1
    v_mov_b32_dpp v{t}, v{d} quad_perm:[1,0,3,2] row_mask:0xf bank_mask:0xf
    v_cvt_pk_bf16_f32 v{d}, v{d}, v{t}
    v_min_u32 v{d}, -2, v{d}
    """)

def ffn_b_partial(a):
    p = a.label("hpoll")
    chunk_addr(a, 12, 13, 6)
    sparse_idx(a, 14, 13)
    a(f"""
    s_lshl_b32 s4, s{SLAY}, 14
    s_lshl_b32 s5, s{SW}, 11
    s_add_u32 s4, s4, s5
    s_add_u32 s4, s4, {hex(A_H)}
    v_mov_b32 v8, 0
    v_mov_b32 v9, 0
    v_mov_b32 v10, 0
    v_mov_b32 v11, 0
    {p}:
    """)
    spin(a)
    for s in range(4):
        a(f"buffer_load_dwordx4 {vr(48+4*s,4)}, v12, {WS}, s4 offen offset:{512*s} sc1")
    a("s_waitcnt vmcnt(0)")
    a("v_max3_u32 v13, v48, v49, v50")
    for i in range(51, 63, 2):
        a(f"v_max3_u32 v13, v{i}, v{i+1}, v13")
    a(f"""
    v_max_u32 v13, v63, v13
    v_cmp_eq_u32 vcc, -1, v13
    s_cbranch_vccnz {p}
    """)
    for s in range(4):
        sm16(a, 8, 48+4*s, 16+8*s, 14)
    a(f"""
    s_lshl_b32 s4, s{SW}, 6
    v_lshlrev_b32 v12, 2, v0
    v_add_u32 v12, s4, v12
    v_mov_b32 v13, 0
    v_mov_b32 v15, 1
    s_nop 2
    v_add_f32 v8, v8, v9
    s_mov_b64 exec, 0xffff
    ds_write_b32 v12, v8 offset:{L_PART}
    s_mov_b64 exec, 1
    ds_add_u32 v13, v15 offset:{L_PCN}
    s_mov_b64 exec, -1
    """)

def ffn_b_frags(a):
    tr_addr(a, 48, 49)
    a(f"""
    v_and_b32 v49, 3, v0
    v_lshl_add_u32 v48, v49, 3, v48
    s_lshl_b32 s4, s{SW}, 13
    s_add_u32 s4, s4, {L_OP}
    v_add_u32 v48, s4, v48
    """)
    tr_reads(a, 16, 48, 4)
    a("s_waitcnt lgkmcnt(0)")

def helper_consts(a):
    T = H_T
    a(f"""
    v_lshlrev_b32 v{H_LANE16}, 4, v0
    v_mov_b32 v{H_ZERO}, 0
    v_mov_b32 v{H_ZERO+1}, 0
    v_mov_b32 v{H_ONE}, 1
    v_lshrrev_b32 v{T}, 3, v0
    v_mul_u32_u24 v{H_NWR}, {XP}, v{T}
    v_and_b32 v{T}, 7, v0
    v_lshl_add_u32 v{H_NWR}, v{T}, 2, v{H_NWR}
    s_lshl_b32 s4, s9, 5
    s_add_u32 s4, s4, {L_OF}
    v_add_u32 v{H_NWR}, s4, v{H_NWR}
    v_mul_u32_u24 v{H_FV}, 3584, v0
    v_lshrrev_b32 v{T}, 1, v0
    v_lshlrev_b32 v{T}, 10, v{T}
    v_and_b32 v{T+1}, 1, v0
    v_lshl_add_u32 v{T}, v{T+1}, 4, v{T}
    s_cmp_lg_u32 s{SISB}, 0
    s_cselect_b64 vcc, -1, 0
    v_cndmask_b32 v{H_FV}, v{H_FV}, v{T}, vcc
    """)

def gen(force_slow=False):
    name = NAME + "_kernel"
    a = Asm(); a.deferred = []
    lab = lambda s: a.label(s)
    end, fin = lab("end"), lab("fin")
    a.end = end
    a(f"s_cmp_ge_u32 s{SG}, 256")
    a(f"s_cbranch_scc1 {end}")
    if STAMPS:
        for i in range(16): a(f"s_mov_b32 s{76+i}, 0")
    stamp(a, 0)
    load_kernargs(a)
    a(f"""
    v_lshrrev_b32 v1, 6, v0
    v_and_b32 v0, 63, v0
    v_readfirstlane_b32 s{SW}, v1
    v_lshlrev_b32 v1, 4, v0
    s_mov_b32 s{SSLOW}, 0
    s_mov_b32 s{SBUD}, {BUDGET}
    s_mov_b32 s{SLAY}, 0
    s_mov_b32 s{SONES}, 0x3f803f80
    s_lshl_b32 s{STOK}, s{SG}, 3
    s_add_u32 s{STOK}, s{STOK}, s{SW}
    s_lshl_b32 s4, s{STOK}, 10
    s_waitcnt lgkmcnt(0)
    """)
    srd(a, S_X, P_X, ROWS_SIZE)
    a(f"buffer_load_dwordx4 v[16:19], v1, s[{S_X}:{S_X+3}], s4 offen")
    stamp(a, 1)
    srd(a, S_WS, P_WS, WS_SIZE)
    srd(a, S_OUT, P_OUT, ROWS_SIZE)
    srd(a, S_WR, P_WR, 1024)
    srd(a, S_DBG, P_DBG, 256)
    a(f"""
    s_cmp_eq_u32 s{SW}, 4
    s_cselect_b32 s{S_WKV}, s{P_WK}, s{P_WV}
    s_cselect_b32 s{S_WKV+1}, s{P_WK+1}, s{P_WV+1}
    s_mov_b32 s{S_WKV+2}, 0x4000
    s_mov_b32 s{S_WKV+3}, 0x00020000
    s_cmp_lt_u32 s{SG}, 128
    s_cselect_b32 s{S_RL}, s{P_WQ}, s{P_WO}
    s_cselect_b32 s{S_RL+1}, s{P_WQ+1}, s{P_WO+1}
    s_mov_b32 s{S_RL+2}, 0x80000
    s_mov_b32 s{S_RL+3}, 0x00020000
    s_cmp_lt_u32 s{SW}, 6
    s_cselect_b32 s{S_FF}, s{P_WG}, s{P_WU}
    s_cselect_b32 s{S_FF+1}, s{P_WG+1}, s{P_WU+1}
    s_cmp_ge_u32 s{SG}, 224
    s_cselect_b32 s{S_FF}, s{P_WD}, s{S_FF}
    s_cselect_b32 s{S_FF+1}, s{P_WD+1}, s{S_FF+1}
    s_cselect_b32 s{SISB}, 1, 0
    s_mov_b32 s{S_FF+2}, {512*3584}
    s_mov_b32 s{S_FF+3}, 0x00020000
    s_and_b32 s4, s{SG}, 7
    s_lshr_b32 s5, s{SG}, 3
    s_mul_i32 s10, s4, 28
    s_add_u32 s10, s10, s5
    s_lshl_b32 s11, s4, 2
    s_add_u32 s11, s11, s5
    s_sub_u32 s11, s11, 28
    s_cmp_ge_u32 s{SG}, 224
    s_cselect_b32 s{SCH}, s11, s10
    """)
    hstart, j0 = lab("hstart"), lab("j0")
    a(f"s_cmp_ge_u32 s{SW}, 4")
    a(f"s_cbranch_scc1 {hstart}")
    a(f"""
    s_bfe_u32 s9, s{SG}, 0x30004
    s_and_b32 s10, s{SG}, 15
    s_lshr_b32 s11, s{SW}, 1
    s_and_b32 s12, s{SW}, 1
    v_bfe_u32 v4, v0, 5, 1
    v_lshlrev_b32 v4, 14, v4
    v_bfe_u32 v5, v0, 4, 1
    v_lshl_add_u32 v4, v5, 12, v4
    v_and_b32 v5, 15, v0
    v_lshl_add_u32 v4, v5, 1, v4
    s_lshl_b32 s4, s9, 16
    s_lshl_b32 s5, s10, 6
    s_add_u32 s4, s4, s5
    s_lshl_b32 s5, s12, 15
    s_add_u32 s4, s4, s5
    s_lshl_b32 s5, s11, 5
    s_add_u32 s4, s4, s5
    s_add_u32 s5, s4, 8192
    """)
    for i, (so, off) in enumerate([(4,0),(4,1024),(5,0),(5,1024),(4,2048),(4,3072),(5,2048),(5,3072)]):
        a(f"buffer_load_ushort v{48+i}, v4, s[{S_RL}:{S_RL+3}], s{so} offen offset:{off}")
    a(f"""
    s_lshl_b32 s10, s10, 1
    s_add_u32 s10, s10, s11
    s_lshl_b32 s4, s10, 14
    s_lshl_b32 s5, s9, 11
    s_add_u32 s4, s4, s5
    s_lshl_b32 s5, s9, 16
    s_lshl_b32 s10, s10, 11
    s_add_u32 s5, s5, s10
    s_add_u32 s5, s5, {hex(WOF)}
    s_cmp_lt_u32 s{SG}, 128
    s_cselect_b32 s13, s4, s5
    s_lshl_b32 s12, s12, 10
    s_add_u32 s13, s13, s12
    s_waitcnt vmcnt(8)
    s_branch {j0}
    """)
    h6, h7, hj = lab("h6"), lab("h7"), lab("hj")
    a(f"""
    {hstart}:
    s_setprio 2
    s_sub_u32 s9, s{SW}, 4
    s_lshl_b32 s8, s9, 14
    s_cmp_eq_u32 s{SW}, 6
    s_cbranch_scc1 {h6}
    s_cmp_eq_u32 s{SW}, 7
    s_cbranch_scc1 {h7}
    s_add_u32 s5, s8, {L_WKV}
    s_mov_b32 s4, 0
    """)
    for q in range(4):
        a("s_mov_b32 m0, s5")
        a("s_add_u32 s5, s5, 4096")
        for i in range(4):
            a(f"buffer_load_dwordx4 v1, s[{S_WKV}:{S_WKV+3}], s4 offen offset:{i*1024} lds")
        a("s_add_u32 s4, s4, 4096")
    a(f"""
    s_waitcnt vmcnt(16)
    s_branch {hj}
    {h6}:
    v_lshrrev_b32 v4, 3, v0
    v_cmp_lt_u32 vcc, 2, v4
    v_lshlrev_b32 v4, 14, v4
    v_and_b32 v5, 7, v0
    v_lshl_add_u32 v4, v5, 2, v4
    v_cndmask_b32 v5, 0, -1, vcc
    s_lshl_b32 s4, s{SG}, 6
    s_add_u32 s4, s4, {hex(SYNC)}
    buffer_store_dword v5, v4, {WS}, s4 offen sc1
    s_waitcnt vmcnt(1)
    s_branch {hj}
    {h7}:
    s_cmp_lg_u32 s{SG}, 0
    s_cbranch_scc1 {hj}x
    v_lshlrev_b32 v4, 6, v0
    v_mov_b32 v5, 0
    s_mov_b32 s4, {hex(A_FLAG0)}
    """)
    for i in range(4):
        a(f"buffer_store_dword v5, v4, {WS}, s4 offen sc1")
        a("s_add_u32 s4, s4, 4096")
    a(f"""
    v_mov_b32 v5, 1
    s_waitcnt vmcnt(0)
    s_mov_b64 exec, 1
    buffer_store_dword v5, off, s[{S_DBG}:{S_DBG+3}], 0 sc1
    s_mov_b64 exec, -1
    s_branch {hj}
    {hj}x:
    s_waitcnt vmcnt(0)
    {hj}:
    {j0}:
    """)
    stamp(a, 2)
    ln_row(a, 16, 32, 40, 24, 56)
    a(f"""
    s_mul_i32 s4, s{SW}, {XP}
    v_add_u32 v20, s4, v1
    ds_write_b128 v20, v[24:27] offset:{L_XN}
    ds_write_b128 v20, v[16:19] offset:{L_XR}
    """)
    hs2, ctop, htop, epi, slow = lab("hs2"), lab("ctop"), lab("htop"), lab("epi"), lab("slow")
    a(f"s_cmp_ge_u32 s{SW}, 4")
    a(f"s_cbranch_scc1 {hs2}")
    a("s_waitcnt vmcnt(0)")
    for i in range(4):
        a(f"v_lshl_or_b32 v{48+i}, v{49+2*i}, 16, v{48+2*i}")
    a(f"buffer_store_dwordx4 v[48:51], v1, {WS}, s13 offen sc1")
    a("s_waitcnt lgkmcnt(0)")
    a("s_barrier")
    publish(a, 16, 6, A_FLAG0, True)
    wait_init(a, 16)
    a(f"s_mov_b32 s10, {hex(A_FLAG0)}")
    cpoll, c_nob1, c_nob2, c_l0, c_go = lab("cpoll"), lab("cnob1"), lab("cnob2"), lab("cl0"), lab("cgo")
    a(f"""
    {ctop}:
    v_and_b32 v2, 15, v0
    v_cmp_eq_u32 vcc, 0, v2
    v_lshlrev_b32 v1, 4, v0
    v_lshlrev_b32 v4, 6, v0
    v_mov_b32 v5, s{SONES}
    v_cndmask_b32 v3, 0, v5, vcc
    v_lshlrev_b32 v2, 4, v2
    v_bfe_u32 v5, v0, 4, 1
    v_lshl_add_u32 v2, v5, 9, v2
    v_bfe_u32 v5, v0, 5, 1
    v_lshl_add_u32 v2, v5, 8, v2
    """)
    for t in range(16):
        for j in range(4):
            a(f"v_mov_b32 v{C_V+8*t+4+j}, v3")
    a(f"""
    s_lshl_b32 s4, s{SW}, 12
    s_add_u32 s10, s10, s4
    s_lshl_b32 s8, s{SW}, 14
    s_lshl_b32 s4, s{SLAY}, 17
    s_add_u32 s8, s8, s4
    s_add_u32 s8, s8, {hex(KF0)}
    s_add_u32 s9, s8, 0x10000
    {cpoll}:
    """)
    spin(a)
    a(f"""
    buffer_load_dword v5, v4, {WS}, s10 offen sc1
    s_waitcnt vmcnt(0)
    v_cmp_eq_u32 vcc, 0, v5
    s_cbranch_vccnz {cpoll}
    v_mov_b32 v5, 0
    v_mov_b32 v6, 1
    s_mov_b64 exec, 1
    ds_add_u32 v5, v6 offset:{L_SYN}
    s_mov_b64 exec, -1
    """)
    stamp(a, 3)
    for t in range(16):
        a(f"buffer_load_dwordx4 {vr(C_K+4*t,4)}, v1, {WS}, s8 offen offset:{1024*(t%4)} sc1")
        a(f"buffer_load_dwordx4 {vr(C_V+8*t,4)}, v2, {WS}, s9 offen offset:{1024*(t%4)} sc1")
        if t % 4 == 3 and t != 15:
            a("s_add_u32 s8, s8, 4096")
            a("s_add_u32 s9, s9, 4096")
    a(f"""
    s_cmp_eq_u32 s{SLAY}, 0
    s_cbranch_scc1 {c_go}
    s_cmp_eq_u32 s{SISB}, 0
    s_cbranch_scc1 {c_nob2}
    s_mov_b32 s{SLAY}, 0
    """)
    ffn_b_partial(a)
    a(f"""
    s_mov_b32 s{SLAY}, 1
    {c_nob2}:
    s_waitcnt lgkmcnt(0)
    s_barrier
    v_mov_b32 v5, 0
    v_lshrrev_b32 v6, 5, v0
    v_lshlrev_b32 v6, 4, v6
    v_and_b32 v7, 15, v0
    v_lshlrev_b32 v7, 1, v7
    ds_read_b32 v5, v5 offset:{L_IDX}
    ds_read_b128 v[16:19], v6 offset:{L_KVX}
    ds_read_u16 v20, v7 offset:{L_KVX+32}
    s_waitcnt lgkmcnt(0)
    v_readfirstlane_b32 s4, v5
    v_lshl_or_b32 v20, v20, 16, v20
    s_and_b32 s4, s4, 0x7ff
    s_sub_u32 s4, 2047, s4
    s_lshr_b32 s5, s4, 9
    s_cmp_lg_u32 s5, s{SW}
    s_cbranch_scc1 {c_go}
    s_and_b32 s5, s4, 31
    s_lshl_b32 s32, 1, s5
    s_mov_b32 s33, s32
    s_bfe_u32 s5, s4, 0x10004
    s_bfe_u32 s10, s4, 0x10003
    s_lshl_b32 s10, s10, 1
    s_add_u32 s5, s5, s10
    s_lshl_b32 s5, s5, 4
    s_bfm_b64 s[34:35], 16, s5
    s_and_b32 s5, s4, 1
    s_lshl_b32 s5, s5, 4
    s_lshl_b32 s5, 0xffff, s5
    s_bfe_u32 s10, s4, 0x20001
    """)
    for j in range(4):
        a(f"s_cmp_eq_u32 s10, {j}")
        a(f"s_cselect_b32 s{36+j}, s5, 0")
    a("s_bfe_u32 s4, s4, 0x40005")
    a("s_waitcnt vmcnt(0)")
    for t in range(16):
        nx = lab("pt")
        a(f"s_cmp_lg_u32 s4, {t}")
        a(f"s_cbranch_scc1 {nx}")
        a("s_mov_b64 exec, s[32:33]")
        for j in range(4):
            a(f"v_mov_b32 v{C_K+4*t+j}, v{16+j}")
        a("s_mov_b64 exec, s[34:35]")
        for j in range(4):
            a(f"v_bfi_b32 v{C_V+8*t+j}, s{36+j}, v20, v{C_V+8*t+j}")
        a("s_mov_b64 exec, -1")
        a(f"s_branch {c_go}")
        a(f"{nx}:")
    a(f"""
    {c_go}:
    s_mul_i32 s4, s{SW}, {OPW}
    s_add_u32 s4, s4, {L_OP}
    v_add_u32 v{C_OP16}, s4, v1
    v_lshlrev_b32 v{C_OP4}, 2, v0
    s_add_u32 s4, s4, 2048
    v_add_u32 v{C_OP4}, s4, v{C_OP4}
    v_mov_b32 v{C_QA}, v1
    v_mov_b32 v7, v0
    v_mov_b32 v{C_IDX}, 0xdddd
    v_mov_b32 v0, 0
    v_mov_b32 v1, 0
    """)
    w0 = lab("q0wait")
    a(f"{w0}:")
    spin(a)
    q_fetch(a, C_Q[0], 0)
    a(f"""
    s_waitcnt lgkmcnt(0)
    v_readfirstlane_b32 s4, v{C_T}
    s_cmp_eq_u32 s4, 4
    s_cbranch_scc0 {w0}
    s_waitcnt vmcnt(31)
    """)
    stamp(a, 4)
    stamp(a, 12, True)
    qk(a, C_S[0], 0, C_Q[0])
    a("s_mov_b32 s12, 4")
    a("s_nop 6")
    loop, loopb = lab("cloop"), lab("cloopb")
    compute_phase(a, 0, first=True)
    a(f"s_branch {loopb}")
    a(".p2align 6")
    a(f"{loop}:")
    compute_phase(a, 0)
    a(f"{loopb}:")
    compute_phase(a, 1)
    if STAMPS:
        a("s_mov_b32 s81, s82")
        a("s_mov_b32 s82, s83")
        a("s_mov_b32 s83, s84")
        stamp(a, 8)
    a(f"""
    v_add_u32 v{C_OP16}, {2*OPB}, v{C_OP16}
    v_add_u32 v{C_OP4}, {2*OPB}, v{C_OP4}
    v_add_u32 v{C_QA}, {2*QS}, v{C_QA}
    s_sub_u32 s12, s12, 1
    s_cmp_lg_u32 s12, 0
    s_cbranch_scc1 {loop}
    """)
    pv(a, 31, C_S[1] + 8)
    a("s_nop 11")
    o_out(a, 0)
    stamp(a, 13, True)
    a("v_mov_b32 v0, v7")
    a(f"s_branch {epi}")
    emit_deferred(a)

    T = H_T
    hb0, hsy = lab("hb0"), lab("hsy")
    a(f"{hs2}:")
    helper_consts(a)
    sparse_idx(a, H_IDX, T)
    chunk_addr(a, H_AXN, T, 4)
    a(f"""
    v_bfe_u32 v{T}, v0, 1, 3
    v_mul_u32_u24 v{T}, {XP}, v{T}
    v_add3_u32 v{H_AXN}, v{H_AXN}, v{T}, 0
    v_add_u32 v{H_AOF}, {L_OF}, v{H_AXN}
    v_add_u32 v{H_AXN}, {L_XN}, v{H_AXN}
    v_bfe_u32 v{H_QW}, v0, 3, 1
    v_lshlrev_b32 v{H_QW}, 9, v{H_QW}
    v_and_b32 v{T}, 7, v0
    v_lshl_add_u32 v{H_QW}, v{T}, 1, v{H_QW}
    v_lshrrev_b32 v{T}, 4, v0
    v_lshl_add_u32 v{H_QW}, v{T}, 5, v{H_QW}
    s_lshl_b32 s4, s9, 7
    v_add_u32 v{H_QW}, s4, v{H_QW}
    s_and_b32 s4, s9, 1
    s_mul_i32 s4, s4, {256*3584}
    s_lshl_b32 s5, s{SCH}, 4
    s_add_u32 s4, s4, s5
    s_mul_i32 s5, s9, {14*32768}
    s_lshl_b32 s10, s{SCH}, 5
    s_add_u32 s5, s5, s10
    s_lshl_b32 s10, s9, 12
    s_mul_i32 s11, s9, 14336
    s_mov_b32 s12, {64*3584}
    s_cmp_lg_u32 s{SISB}, 0
    s_cselect_b32 s98, s5, s4
    s_cselect_b32 s99, 0x8000, s12
    s_cselect_b32 s100, s11, s10
    s_cselect_b32 s101, 14, 4
    s_add_u32 s100, s100, {L_OP}
    s_cmp_lg_u32 s{SW}, 7
    s_cbranch_scc1 {hb0}
    """)
    reset_counters(a, T, True, [L_BAD, L_PUB, L_SYN, L_IDX, L_PCN])
    a(f"""
    v_mov_b32 v{T+1}, 4
    ds_write_b32 v{H_ZERO}, v{T+1} offset:{L_Q + 8*QS + 1024}
    {hb0}:
    """)
    nokv0, kvd0 = lab("nokv0"), lab("kvd0")
    def kv_frags():
        tr_addr(a, H_TR, T)
        a(f"""
        v_and_b32 v{T}, 3, v0
        v_lshl_add_u32 v{H_TR}, v{T}, 3, v{H_TR}
        s_add_u32 s5, s8, {L_WKV}
        v_add_u32 v{H_TR}, s5, v{H_TR}
        """)
        tr_reads(a, H_KB, H_TR, 8)
    a(f"""
    s_cmp_ge_u32 s{SW}, 6
    s_cbranch_scc1 {nokv0}
    s_waitcnt vmcnt(0)
    """)
    kv_frags()
    a("s_waitcnt lgkmcnt(0)")
    a("s_barrier")
    kv_mm(a, H_AXN)
    kv_store(a, 0)
    a(f"s_branch {kvd0}")
    a(f"{nokv0}:")
    a("s_waitcnt lgkmcnt(0)")
    a("s_barrier")
    a(f"s_cmp_eq_u32 s{SW}, 7")
    a(f"s_cbranch_scc1 {hsy}")
    a(f"{kvd0}:")
    publish(a, T, 6, A_FLAG0, True)
    stamp(a, 5)
    a(f"{hsy}:")
    spin(a)
    a(f"""
    ds_read_b32 v{T}, v{H_ZERO} offset:{L_SYN}
    s_waitcnt lgkmcnt(0)
    v_cmp_ne_u32 vcc, 4, v{T}
    s_cbranch_vccnz {hsy}
    """)
    h_wq_loads(a, H_BQ, 0)
    h_wq_loads(a, H_BO, 1)
    a(f"{htop}:")
    stamp(a, 3)
    for s in range(8):
        a(f"ds_read_b128 {vr(H_XNF+4*s,4)}, v{H_AXN} offset:{128*s}")
    helper_consts(a)
    h_sentinels(a)
    a(f"v_mov_b32 v{H_HI}, {'0x7f800000' if force_slow else 0}")
    a(f"v_mov_b32 v{H_LO}, 1.0")
    a("s_waitcnt lgkmcnt(0)")
    h_qjob(a, H_BQ, 0, 16)
    stamp(a, 4)
    h_wq_loads(a, H_BQ, 2)
    for i in range(32):
        a(f"v_mov_b32 v{H_ACC+i}, 0")
    h_qjob(a, H_BO, 1, 16)
    h_wo_loads(a, H_BO, 0)
    for b in range(8):
        vm = 0
        if b + 2 < 8:
            h_qjob(a, H_BQ, b + 2, 16)
            if b + 3 < 8:
                h_wq_loads(a, H_BQ, b + 3)
                vm = 16
        h_njob(a, b, 4 if b < 7 else 0)
        h_ojob(a, H_BO, b, vm)
        if b in (3, 6, 7): stamp(a, {3: 6, 6: 7, 7: 8}[b])
        if b + 1 < 8:
            h_wo_loads(a, H_BO, b + 1)
        if b == 5:
            h_stage_ffn(a)
            sk = lab("l1")
            a(f"s_cmp_lg_u32 s{SLAY}, 0")
            a(f"s_cbranch_scc1 {sk}")
            h_wq_loads(a, H_BQ, 0)
            a(f"{sk}:")
    h_finish(a, False)
    a(f"""
    {epi}:
    v_lshlrev_b32 v16, 4, v0
    buffer_load_dwordx4 v[60:63], v16, s[{S_WR}:{S_WR+3}], 0 offen
    s_mul_i32 s4, s{SW}, {XP}
    v_add_u32 v18, s4, v16
    ds_read_b128 v[20:23], v18 offset:{L_XR}
    s_mul_i32 s4, s{SW}, {XOP}
    s_add_u32 s4, s4, {L_XO}
    v_lshlrev_b32 v17, 5, v0
    v_add_u32 v17, s4, v17
    v_mov_b32 v19, 0
    s_waitcnt lgkmcnt(0)
    """)
    unpack8(a, 40, 20)
    a(f"""
    s_barrier
    ds_read_b32 v19, v19 offset:{L_BAD}
    ds_read_b128 v[32:35], v17
    ds_read_b128 v[36:39], v17 offset:16
    s_waitcnt lgkmcnt(2)
    v_readfirstlane_b32 s4, v19
    s_cmp_gt_u32 s4, s{SSLOW}
    s_cbranch_scc1 {slow}
    s_waitcnt lgkmcnt(0)
    """)
    stamp(a, 9)
    pk_add8(a, 32, 32, 40)
    pack8(a, 20, 32)
    ln_row(a, 20, 32, 40, 24, 48)
    a("s_waitcnt vmcnt(0)")
    for i in range(4):
        a(f"v_dot2_f32_bf16 v30, v{24+i}, v{60+i}, {'0' if i == 0 else 'v30'}")
    fill = L(unpack8, 40, 24) + L(pk_add8, 32, 32, 40) + L(pack8, 56, 32)
    reduce_fill(a, [30], [13], fill, lead=3)
    a(f"""
    v_mov_b32 v30, s13
    v_cvt_pk_bf16_f32 v30, v30, v30
    v_ashrrev_i32 v31, 31, v30
    v_or_b32 v31, 0x80000000, v31
    v_xor_b32 v30, v30, v31
    v_and_b32 v30, 0xffff0000, v30
    s_sub_u32 s4, {2047 + 0x8000}, s{STOK}
    v_or_b32 v30, s4, v30
    s_lshl_b32 s4, s{SW}, 2
    v_mov_b32 v31, s4
    ds_write_b32 v31, v30 offset:{L_KEY}
    ds_write_b128 v18, v[56:59] offset:{L_XR}
    v_and_b32 v31, 7, v0
    v_lshlrev_b32 v31, 2, v31
    s_waitcnt lgkmcnt(0)
    s_barrier
    ds_read_b32 v31, v31 offset:{L_KEY}
    s_lshl_b32 s4, s{SG}, 10
    s_lshl_b32 s5, s{SLAY}, 19
    s_add_u32 s4, s4, s5
    s_add_u32 s4, s4, {hex(CAND)}
    s_add_u32 s5, s4, 0x40000
    s_waitcnt lgkmcnt(0)
    v_cmp_gt_u32 vcc, v31, v30
    s_mov_b32 s11, 0
    """)
    nb, nb2, e1, e2 = lab("notbest"), lab("nb2"), lab("e1"), lab("e2")
    a(f"""
    s_cbranch_vccnz {nb}
    buffer_store_dwordx4 v[24:27], v16, {WS}, s4 offen sc1
    buffer_store_dwordx4 v[20:23], v16, {WS}, s5 offen sc1
    s_mov_b32 s11, 1
    s_branch {e1}
    {nb}:
    s_cmp_eq_u32 s{SLAY}, 0
    s_cbranch_scc1 {e1}
    s_lshl_b32 s4, s{STOK}, 10
    buffer_store_dwordx4 v[56:59], v16, s[{S_OUT}:{S_OUT+3}], s4 offen
    {e1}:
    s_cmp_lg_u32 s{SLAY}, 0
    s_cbranch_scc1 {e2}
    """)
    ln_row(a, 56, 32, 40, 60, 48)
    a(f"""
    ds_write_b128 v18, v[60:63] offset:{L_XN}
    {e2}:
    s_cmp_eq_u32 s11, 0
    s_cbranch_scc1 {nb2}
    s_lshl_b32 s4, s{SG}, 6
    s_lshl_b32 s5, s{SLAY}, 14
    s_add_u32 s4, s4, s5
    s_add_u32 s4, s4, {hex(A_KEY)}
    s_waitcnt vmcnt(0)
    s_mov_b64 exec, 1
    buffer_store_dword v30, off, {WS}, s4 sc1
    s_mov_b64 exec, -1
    {nb2}:
    """)
    stamp(a, 10)
    t_h, t_c1, t_w7 = lab("th"), lab("tc1"), lab("tw7")
    a(f"s_cmp_ge_u32 s{SW}, 4")
    a(f"s_cbranch_scc1 {t_h}")
    a("s_waitcnt lgkmcnt(0)")
    a("s_barrier")
    a(f"s_cmp_eq_u32 s{SISB}, 0")
    a(f"s_cbranch_scc1 {c_nob1}")
    ffn_b_frags(a)
    a(f"s_cmp_eq_u32 s{SLAY}, 0")
    a(f"s_cbranch_scc1 {c_nob1}")
    ffn_b_partial(a)
    a(f"""
    {c_nob1}:
    s_cmp_lg_u32 s{SLAY}, 0
    s_cbranch_scc1 {fin}
    s_mov_b32 s{SLAY}, 1
    s_mov_b32 s{SSLOW}, 0
    s_mov_b32 s10, {hex(A_FLAG1)}
    """)
    stamp_layer(a)
    a(f"s_branch {ctop}")
    t_nkv, t_b, t_fix, t_b3, t_nw = lab("tnkv"), lab("tb"), lab("tfix"), lab("tb3"), lab("tnw")
    a(f"""
    {t_h}:
    s_cmp_lg_u32 s{SLAY}, 0
    s_cbranch_scc1 {t_nw}
    """)
    h_wq_loads(a, H_BO, 1)
    a(f"""
    {t_nw}:
    s_cmp_eq_u32 s{SW}, 7
    s_cbranch_scc1 {t_w7}
    s_cmp_ge_u32 s{SW}, 6
    s_cselect_b32 s4, 1, s{SLAY}
    s_cmp_lg_u32 s4, 0
    s_cbranch_scc1 {t_nkv}
    """)
    kv_frags()
    a("s_waitcnt lgkmcnt(0)")
    a("s_barrier")
    kv_mm(a, H_AXN)
    kv_store(a, 1)
    publish(a, T, 8, A_FLAG1, False)
    a(f"s_branch {t_b}")
    a(f"{t_nkv}:")
    a("s_waitcnt lgkmcnt(0)")
    a("s_barrier")
    a(f"""
    {t_b}:
    s_cmp_eq_u32 s{SISB}, 0
    s_cbranch_scc1 {t_fix}
    """)
    ffn_b_frags(a)
    ffn_b_partial(a)
    a(f"""
    {t_fix}:
    s_cmp_lg_u32 s{SLAY}, 0
    s_cbranch_scc1 {fin}
    s_cmp_ge_u32 s{SW}, 6
    s_cbranch_scc1 {t_b3}
    """)
    yp, ip, nown = lab("ypoll"), lab("ipoll"), lab("nown")
    a(f"""
    v_lshrrev_b32 v20, 1, v0
    v_lshlrev_b32 v20, 6, v20
    v_and_b32 v21, 1, v0
    v_lshl_add_u32 v20, v21, 4, v20
    v_mov_b32 v21, 0
    s_mov_b32 s4, {hex(A_Y)}
    {ip}:
    """)
    spin(a)
    a(f"""
    s_sleep 2
    ds_read_b32 v22, v21 offset:{L_IDX}
    s_waitcnt lgkmcnt(0)
    v_readfirstlane_b32 s{SKEY}, v22
    s_cmp_eq_u32 s{SKEY}, 0
    s_cbranch_scc1 {ip}
    {yp}:
    """)
    spin(a)
    a(f"""
    buffer_load_dwordx4 v[16:19], v20, {WS}, s4 offen sc1
    s_waitcnt vmcnt(0)
    v_max3_u32 v22, v16, v17, v18
    v_max_u32 v22, v19, v22
    v_cmp_eq_u32 vcc, -1, v22
    s_cbranch_vccnz {yp}
    """)
    stamp(a, 13)
    ln_row(a, 16, 32, 40, 24, 56)
    a(f"""
    s_lshl_b32 s4, s9, 10
    s_add_u32 s4, s4, {L_XF}
    v_add_u32 v20, s4, v{H_LANE16}
    ds_write_b128 v20, v[24:27]
    """)
    chunk_addr(a, 21, 22, 4)
    a(f"""
    v_add_u32 v21, s4, v21
    s_and_b32 s4, s{SKEY}, 0x7ff
    s_sub_u32 s4, 2047, s4
    s_lshr_b32 s5, s4, 3
    s_cmp_lg_u32 s5, s{SG}
    s_cbranch_scc1 {nown}
    s_and_b32 s4, s4, 7
    s_mul_i32 s4, s4, {XP}
    v_add_u32 v20, s4, v{H_LANE16}
    ds_write_b128 v20, v[24:27] offset:{L_XN}
    ds_write_b128 v20, v[16:19] offset:{L_XR}
    {nown}:
    """)
    kv_mm(a, 21)
    a(f"""
    v_cvt_pk_bf16_f32 v{H_QD}, v{H_QD}, v{H_QD}
    s_lshl_b32 s4, s9, 5
    v_lshlrev_b32 v20, 1, v0
    v_add_u32 v20, s4, v20
    s_mov_b64 exec, 0xffff
    ds_write_b16 v20, v{H_QD} offset:{L_KVX}
    s_mov_b64 exec, -1
    {t_b3}:
    s_waitcnt lgkmcnt(0)
    s_barrier
    s_mov_b32 s{SLAY}, 1
    s_mov_b32 s{SSLOW}, 0
    """)
    stamp(a, 14)
    stamp_layer(a)
    a(f"s_branch {htop}")
    kp, w7b, w7j, pp, w7e = lab("kpoll"), lab("w7b"), lab("w7j"), lab("ppoll"), lab("w7e")
    a(f"{t_w7}:")
    reset_counters(a, T, True, [L_BAD])
    a(f"""
    s_waitcnt lgkmcnt(0)
    s_barrier
    s_cmp_lg_u32 s{SISB}, 0
    s_cbranch_scc1 {kp}x
    """)
    tr_addr(a, 16, 17, 4)
    a(f"""
    v_and_b32 v17, 1, v0
    v_lshl_add_u32 v16, v17, 3, v16
    v_bfe_u32 v17, v0, 1, 1
    v_lshl_add_u32 v16, v17, 13, v16
    v_add_u32 v16, {L_OP}, v16
    """)
    tr_reads(a, H_KB, 16, 8, pitch=16)
    a(f"{kp}x:")
    chunk_addr(a, 17, 18, 4)
    a(f"""
    v_lshlrev_b32 v16, 6, v0
    s_lshl_b32 s4, s{SLAY}, 14
    s_add_u32 s4, s4, {hex(A_KEY)}
    s_add_u32 s5, s4, 4096
    s_add_u32 s10, s4, 8192
    s_add_u32 s11, s4, 12288
    v_mov_b32 v{H_QD}, 0
    v_mov_b32 v{H_QD+1}, 0
    v_mov_b32 v{H_QD+2}, 0
    v_mov_b32 v{H_QD+3}, 0
    {kp}:
    """)
    spin(a)
    a(f"""
    buffer_load_dword v20, v16, {WS}, s4 offen sc1
    buffer_load_dword v21, v16, {WS}, s5 offen sc1
    buffer_load_dword v22, v16, {WS}, s10 offen sc1
    buffer_load_dword v23, v16, {WS}, s11 offen sc1
    s_waitcnt vmcnt(0)
    v_min3_u32 v24, v20, v21, v22
    v_min_u32 v24, v23, v24
    v_cmp_eq_u32 vcc, 0, v24
    s_cbranch_vccnz {kp}
    v_max3_u32 v20, v20, v21, v22
    v_max_u32 v20, v23, v20
    """)
    reduce_fill(a, [20], [SKEY], op="v_max_u32")
    stamp(a, 11)
    a(f"""
    s_and_b32 s12, s{SKEY}, 0x7ff
    s_sub_u32 s12, 2047, s12
    s_lshr_b32 s4, s12, 3
    s_lshl_b32 s4, s4, 10
    s_lshl_b32 s5, s{SLAY}, 19
    s_add_u32 s4, s4, s5
    s_add_u32 s4, s4, {hex(CAND)}
    s_cmp_lg_u32 s{SISB}, 0
    s_cbranch_scc1 {w7b}
    """)
    for s in range(8):
        a(f"buffer_load_dwordx4 {vr(32+4*s,4)}, v17, {WS}, s4 offen offset:{128*s} sc1")
    a(f"""
    v_mov_b32 v20, s{SKEY}
    ds_write_b32 v{H_ZERO}, v20 offset:{L_IDX}
    s_waitcnt lgkmcnt(0)
    """)
    for s in range(8):
        a(f"s_waitcnt vmcnt({7-s})")
        sm16(a, H_QD, 32+4*s, H_KB+8*s, H_IDX)
    D = H_QD
    a(f"""
    v_lshlrev_b32 v19, 1, v0
    s_lshl_b32 s4, s{SLAY}, 14
    s_lshl_b32 s5, s{SCH}, 6
    s_add_u32 s4, s4, s5
    s_add_u32 s4, s4, {hex(A_H)}
    s_nop 2
    v_add_f32 v{D}, v{D}, v{D+1}
    v_cvt_pk_bf16_f32 v{D}, v{D}, v{D}
    v_lshlrev_b32 v{D}, 16, v{D}
    v_mul_f32 v{D+2}, {f32(-LOG2E)}, v{D}
    v_exp_f32 v{D+2}, v{D+2}
    v_mov_b32_dpp v{D+1}, v{D} row_ror:8 row_mask:0xf bank_mask:0xf
    v_add_f32 v{D+2}, 1.0, v{D+2}
    v_rcp_f32 v{D+2}, v{D+2}
    s_nop 0
    v_mul_f32 v{D+2}, v{D}, v{D+2}
    v_cvt_pk_bf16_f32 v{D+2}, v{D+2}, v{D+2}
    v_lshlrev_b32 v{D+2}, 16, v{D+2}
    v_mul_f32 v{D+2}, v{D+2}, v{D+1}
    """)
    pack_pairs(a, D + 2, D + 3)
    a(f"""
    s_mov_b64 exec, 0x55
    buffer_store_dword v{D+2}, v19, {WS}, s4 offen sc1
    s_mov_b64 exec, -1
    s_branch {w7j}
    {w7b}:
    s_lshl_b32 s5, s{SCH}, 5
    s_add_u32 s4, s4, s5
    s_add_u32 s5, s4, 0x40000
    v_and_b32 v19, 14, v0
    v_lshlrev_b32 v19, 1, v19
    buffer_load_dword v21, v19, {WS}, s4 offen sc1
    buffer_load_dword v22, v19, {WS}, s5 offen sc1
    v_mov_b32 v20, s{SKEY}
    ds_write_b32 v{H_ZERO}, v20 offset:{L_IDX}
    s_and_b32 s4, s{SKEY}, 0xffff0000
    s_ashr_i32 s5, s4, 31
    s_not_b32 s5, s5
    s_or_b32 s5, s5, 0x80000000
    s_xor_b32 s4, s4, s5
    s_and_b32 s4, s4, 0xffff0000
    v_mov_b32 v20, s4
    v_mul_f32 v20, {f32(-LOG2E)}, v20
    v_exp_f32 v20, v20
    v_and_b32 v23, 1, v0
    v_add_f32 v20, 1.0, v20
    v_rcp_f32 v20, v20
    v_lshlrev_b32 v23, 4, v23
    v_cvt_pk_bf16_f32 v20, v20, v20
    v_lshlrev_b32 v20, 16, v20
    v_sub_u32 v23, 16, v23
    v_and_b32 v24, 15, v0
    v_lshlrev_b32 v24, 2, v24
    s_mul_i32 s10, s{SLAY}, 7
    s_add_u32 s10, s10, 7
    s_waitcnt vmcnt(0)
    v_lshlrev_b32 v21, v23, v21
    v_lshlrev_b32 v22, v23, v22
    v_and_b32 v21, 0xffff0000, v21
    v_and_b32 v22, 0xffff0000, v22
    {pp}:
    """)
    spin(a)
    a(f"ds_read_b32 v25, v{H_ZERO} offset:{L_PCN}")
    for i in range(7):
        a(f"ds_read_b32 v{32+i}, v24 offset:{L_PART + 64*i}")
    a(f"""
    s_waitcnt lgkmcnt(0)
    v_cmp_ne_u32 vcc, s10, v25
    s_cbranch_vccnz {pp}
    v_add_f32 v32, v32, v33
    v_add_f32 v34, v34, v35
    v_add_f32 v36, v36, v37
    v_add_f32 v32, v32, v34
    v_add_f32 v36, v36, v38
    v_add_f32 v32, v32, v36
    v_cvt_pk_bf16_f32 v32, v32, v32
    v_lshlrev_b32 v32, 16, v32
    v_mul_f32 v32, v32, v20
    v_cvt_pk_bf16_f32 v32, v32, v32
    v_lshlrev_b32 v32, 16, v32
    v_add_f32 v32, v32, v21
    v_cvt_pk_bf16_f32 v32, v32, v32
    v_lshlrev_b32 v32, 16, v32
    v_add_f32 v32, v32, v22
    """)
    pack_pairs(a, 32, 33)
    yo = lab("yout")
    a(f"""
    s_mov_b64 exec, 0x5555
    s_cmp_lg_u32 s{SLAY}, 0
    s_cbranch_scc1 {yo}
    s_lshl_b32 s4, s{SCH}, 6
    s_add_u32 s4, s4, {hex(A_Y)}
    buffer_store_dword v32, v19, {WS}, s4 offen sc1
    s_mov_b64 exec, -1
    s_branch {w7j}
    {yo}:
    s_lshl_b32 s4, s12, 10
    s_lshl_b32 s5, s{SCH}, 5
    s_add_u32 s4, s4, s5
    buffer_store_dword v32, v19, s[{S_OUT}:{S_OUT+3}], s4 offen
    s_mov_b64 exec, -1
    {w7j}:
    """)
    stamp(a, 12)
    a(f"""
    s_cmp_eq_u32 s{SLAY}, 0
    s_cbranch_scc1 {t_b3}
    s_lshr_b32 s4, s12, 3
    s_cmp_eq_u32 s4, s{SG}
    s_cbranch_scc1 {fin}
    v_and_b32 v20, 7, v0
    v_lshlrev_b32 v20, 2, v20
    ds_read_b32 v20, v20 offset:{L_KEY}
    s_waitcnt lgkmcnt(0)
    """)
    reduce_fill(a, [20], [4], op="v_max_u32")
    a(f"""
    s_and_b32 s4, s4, 0x7ff
    s_sub_u32 s4, 2047, s4
    s_and_b32 s5, s4, 7
    s_mul_i32 s5, s5, {XP}
    v_add_u32 v20, s5, v{H_LANE16}
    ds_read_b128 v[24:27], v20 offset:{L_XR}
    s_lshl_b32 s4, s4, 10
    s_waitcnt lgkmcnt(0)
    buffer_store_dwordx4 v[24:27], v{H_LANE16}, s[{S_OUT}:{S_OUT+3}], s4 offen
    {fin}:
    """)
    stamp_flush(a)
    a(f"{end}:")
    a("s_endpgm")
    hs = lab("hslow")
    a(f"""
    {slow}:
    s_mov_b32 s{SSLOW}, 1
    s_waitcnt vmcnt(0) lgkmcnt(0)
    s_barrier
    s_cmp_ge_u32 s{SW}, 4
    s_cbranch_scc1 {hs}
    v_lshlrev_b32 v{C_QA}, 4, v0
    v_lshlrev_b32 v{C_OP4}, 2, v0
    s_lshl_b32 s4, s{SW}, 8
    s_add_u32 s4, s4, {L_MX}
    v_add_u32 v{C_OP16}, s4, v{C_OP4}
    s_mov_b32 s12, 8
    """)
    l1 = lab("mx")
    a(f"{l1}:")
    a(f"ds_read_b128 {vr(C_Q[0],4)}, v{C_QA}")
    a(f"v_mov_b32 v{C_T}, 0xff800000")
    a("s_waitcnt lgkmcnt(0)")
    for t in range(16):
        qk(a, C_S[0], t, C_Q[0])
        a("s_nop 15")
        for i in range(8):
            a(f"v_max3_f32 v{C_T}, v{C_S[0]+2*i}, v{C_S[0]+2*i+1}, v{C_T}")
    a(f"""
    ds_write_b32 v{C_OP16}, v{C_T}
    v_add_u32 v{C_OP16}, 1024, v{C_OP16}
    v_add_u32 v{C_QA}, {QS}, v{C_QA}
    s_sub_u32 s12, s12, 1
    s_cmp_lg_u32 s12, 0
    s_cbranch_scc1 {l1}
    s_waitcnt lgkmcnt(0)
    s_barrier
    v_lshlrev_b32 v{C_QA}, 4, v0
    s_mul_i32 s4, s{SW}, {OPW}
    s_add_u32 s4, s4, {L_OP + OPB}
    v_add_u32 v{C_OP16}, s4, v{C_QA}
    s_add_u32 s4, s4, 2048
    v_add_u32 v{C_OP4}, s4, v{C_OP4}
    v_and_b32 v1, 31, v0
    v_lshlrev_b32 v1, 2, v1
    v_add_u32 v1, {L_MX}, v1
    s_mov_b32 s12, 8
    """)
    l2 = lab("sl")
    a(f"{l2}:")
    a(f"ds_read_b128 {vr(C_Q[0],4)}, v{C_QA}")
    for i in range(8):
        a(f"ds_read_b32 v{C_S[1]+i}, v1 offset:{128*i}")
    for i in range(16):
        a(f"v_mov_b32 v{C_O+i}, 0")
    a("s_waitcnt lgkmcnt(0)")
    a(f"""
    v_max3_f32 v{C_T}, v{C_S[1]}, v{C_S[1]+1}, v{C_S[1]+2}
    v_max3_f32 v{C_T}, v{C_S[1]+3}, v{C_S[1]+4}, v{C_T}
    v_max3_f32 v{C_T}, v{C_S[1]+5}, v{C_S[1]+6}, v{C_T}
    v_max_f32 v{C_T}, v{C_S[1]+7}, v{C_T}
    """)
    for t in range(16):
        qk(a, C_S[0], t, C_Q[0])
        a("s_nop 15")
        for i in range(16):
            a(f"v_sub_f32 v{C_S[0]+i}, v{C_S[0]+i}, v{C_T}")
        ex(a, C_S[0], 0, 16)
        a("s_nop 1")
        pv(a, 2*t, C_S[0])
        pv(a, 2*t+1, C_S[0]+8)
    a("s_nop 15")
    o_out(a, 0)
    a(f"""
    v_add_u32 v{C_OP16}, {OPB}, v{C_OP16}
    v_add_u32 v{C_OP4}, {OPB}, v{C_OP4}
    v_add_u32 v{C_QA}, {QS}, v{C_QA}
    v_add_u32 v1, 1024, v1
    s_waitcnt lgkmcnt(0)
    s_sub_u32 s12, s12, 1
    s_cmp_lg_u32 s12, 0
    s_cbranch_scc1 {l2}
    s_branch {epi}
    {hs}:
    """)
    h_sentinels(a)
    reset_counters(a, H_T + 4, False)
    for i in range(32):
        a(f"v_mov_b32 v{H_ACC+i}, 0")
    a("s_waitcnt lgkmcnt(0)")
    a("s_barrier")
    for b in range(8):
        h_wo_loads(a, H_BO, b)
        h_njob(a, b, 4)
        h_ojob(a, H_BO, b, 0)
        if b == 6:
            h_stage_ffn(a)
    h_finish(a, True)
    a(f"s_branch {epi}")
    return kstart(name) + a.text() + kd(name, 256)

def build(force_slow=False):
    hdr = open("cdna_kernels/" + NAME + ".s.ref").read().split("; Override launch")[0]
    s = hdr + f"; @launch grid=(256,1,1) block=(512,1,1) lds={L_END}\n"
    s += '.amdgcn_target "amdgcn-amd-amdhsa--gfx950"\n'
    s += gen(force_slow)
    return s

if __name__ == "__main__":
    out = sys.argv[1] if len(sys.argv) > 1 else "cdna_kernels/" + NAME + ".s"
    STAMPS = "--stamp" in sys.argv
    open(out, "w").write(build("--slow" in sys.argv))
    print("L_END", L_END)
```

```python
import sys
from common import *

WQF, WOF = 0x000000, 0x080000
KF0 = 0x100000
CAND = 0x140000
SYNC = 0x240000
A_FLAG1, A_KEY, A_H, A_Y, A_FLAG0 = SYNC, SYNC + 0x4000, SYNC + 0xC000, SYNC + 0x14000, SYNC + 0x20000
STAMP = 0x280000
WS_SIZE = 0x400000
ROWS_SIZE = 2048 * 1024
S_WS, S_X, S_OUT, S_WKV, S_WR, S_FF, S_RL, S_DBG = 44, 48, 52, 56, 60, 64, 68, 72
S_TA = S_WKV
WS = f"s[{S_WS}:{S_WS+3}]"
SG, SW, STOK, SSLOW, SBUD, SLAY, SKEY, SCH, SISB, SONES = 2, 3, 6, 7, 14, 15, 42, 43, 96, 95
XP = 1056
QS = 1040
L_Q = 0
L_OFC = 10496
L_KEY = L_OFC + 32
L_BAD = L_KEY + 32
L_PUB = L_BAD + 4
L_SYN = L_BAD + 8
L_IDX = L_BAD + 12
L_PCN = L_BAD + 16
L_RAW = L_BAD + 20
L_DUTY = L_BAD + 24
L_XNC = L_BAD + 28
L_KVD = L_BAD + 32
L_KST = L_BAD + 36
L_KVX = L_BAD + 64
L_PART = 10752
L_XF = L_PART + 512
L_XN = L_XF + 2048
L_XR = L_XN + 8 * XP
L_OF = L_XR + 8 * XP
OPW = 2304
OPB = 4 * OPW
L_OP = L_OF + 8 * XP
XOP = 2080
L_XO = L_OP
L_MX = L_XN
L_STG = L_OP + 2 * OPB
L_WKV = L_STG + 65536
L_END = L_WKV + 32768
assert L_XN % 16 == 0 and L_OP % 16 == 0 and L_WKV % 16 == 0 and L_KVX % 16 == 0 and L_KVX + 64 <= L_PART
assert L_END <= 163840
KSCALE = 0.25 * 1.4426950408889634
LOG2E = 1.4426950408889634

STAMPS = False
BUDGET = 0x40000
WQ1_SLEEP = 4
TOUCH = True
def stamp(a, i, cyc=False):
    if not STAMPS: return
    a(f"""
    {'s_memtime' if cyc else 's_memrealtime'} s[92:93]
    s_waitcnt lgkmcnt(0)
    s_mov_b32 s{76+i}, s92
    """)
def stamp_layer(a):
    if not STAMPS: return
    for i in range(16):
        a(f"s_mov_b32 s{16+i}, s{76+i}")
def stamp_flush(a):
    if not STAMPS: return
    stamp(a, 15)
    a(f"""
    s_mov_b64 exec, 1
    s_lshl_b32 s92, s{SG}, 10
    s_lshl_b32 s93, s{SW}, 7
    s_add_u32 s92, s92, s93
    s_add_u32 s92, s92, {hex(STAMP)}
    """)
    for i in range(32):
        a(f"v_mov_b32 v1, s{16+i if i < 16 else 76+i-16}")
        a(f"buffer_store_dword v1, off, {WS}, s92 offset:{4*i}")

def spin(a):
    a(f"s_sub_u32 s{SBUD}, s{SBUD}, 1")
    a(f"s_cbranch_scc1 {a.end}")

def reduce_fill(a, regs, sdst, fill=(), op="v_add_f32", lead=2):
    fill = list(fill)
    def pad(n):
        while n > 0 and fill:
            a(fill.pop(0)); n -= 1
        if n > 0: a(f"s_nop {n-1}")
    pad(lead)
    need = max(0, 2 - (len(regs) - 1))
    for st in DPP_STEPS:
        for r in regs:
            a(f"{op}_dpp v{r}, v{r}, v{r} {st}")
        pad(need)
    if need == 0 and len(regs) < 2: pad(1)
    for r, s in zip(regs, sdst):
        a(f"v_readlane_b32 s{s}, v{r}, 63")
    pad(2)
    for f in fill: a(f)

def L(fn, *args):
    t = Asm(); fn(t, *args); return [x.strip() for x in t.l]

def ln_dots(a, P, ra, rb):
    for i in range(4):
        a(f"v_dot2_f32_bf16 v{ra}, v{P+i}, s{SONES}, {'0' if i == 0 else 'v%d' % ra}")
        a(f"v_dot2_f32_bf16 v{rb}, v{P+i}, v{P+i}, {'0' if i == 0 else 'v%d' % rb}")

def ln_scale(a, t, ssum, ssq, vsrc=False):
    m, v, p = t + 2, t, t + 1
    if vsrc:
        a(f"v_mul_f32 v{m}, {f32(1/512)}, v{ssum}")
        a(f"v_mul_f32 v{v}, {f32(1/512)}, v{ssq}")
    else:
        a(f"v_mov_b32 v{p}, {f32(1/512)}")
        a(f"v_mul_f32 v{m}, s{ssum}, v{p}")
        a(f"v_mul_f32 v{v}, s{ssq}, v{p}")
    a(f"""
    v_fma_f32 v{v}, -v{m}, v{m}, v{v}
    v_max_f32 v{v}, 0, v{v}
    v_cvt_pk_bf16_f32 v{p}, v{m}, v{v}
    v_and_b32 v{v}, 0xffff0000, v{p}
    v_add_f32 v{v}, {f32(1e-5)}, v{v}
    v_cvt_pk_bf16_f32 v{v}, v{v}, v{v}
    v_lshlrev_b32 v{v}, 16, v{v}
    v_sqrt_f32 v{v}, v{v}
    v_lshlrev_b32 v{m}, 16, v{p}
    v_cvt_pk_bf16_f32 v{v}, v{v}, v{v}
    v_lshlrev_b32 v{v}, 16, v{v}
    v_rcp_f32 v{v}, v{v}
    s_nop 0
    v_mul_f32 v{m}, -v{m}, v{v}
    """)

def ln_apply2(a, X, D, P, t):
    for i in range(4):
        a(f"v_pk_fma_f32 {vr(D+2*i,2)}, {vr(X+2*i,2)}, {vr(t,2)}, {vr(t+2,2)} op_sel_hi:[1,0,0]")
    pack8(a, P, D)

def pk_add8(a, D, A, B):
    for i in range(4):
        a(f"v_pk_add_f32 {vr(D+2*i,2)}, {vr(A+2*i,2)}, {vr(B+2*i,2)}")

def ln_row(a, P, X, D, O, t):
    ln_dots(a, P, t + 4, t + 5)
    reduce_fill(a, [t + 4, t + 5], [4, 5], L(unpack8, X, P), lead=3)
    ln_scale(a, t, 4, 5)
    ln_apply2(a, X, D, O, t)

def ln_half(a, P, X, O, t):
    ra, rb, ca, cb = t + 4, t + 5, t + 6, t + 7
    for i in range(8):
        a(f"v_dot2_f32_bf16 v{ra}, v{P+i}, s{SONES}, {'0' if i == 0 else 'v%d' % ra}")
        a(f"v_dot2_f32_bf16 v{rb}, v{P+i}, v{P+i}, {'0' if i == 0 else 'v%d' % rb}")
    fill = L(unpack8, X, P) + L(unpack8, X + 8, P + 4)
    def pad(n):
        for _ in range(n): a(fill.pop(0))
    pad(3)
    for st in DPP_STEPS[:4]:
        a(f"v_add_f32_dpp v{ra}, v{ra}, v{ra} {st}")
        a(f"v_add_f32_dpp v{rb}, v{rb}, v{rb} {st}")
        pad(1)
    a(f"v_mov_b32 v{ca}, v{ra}")
    a(f"v_mov_b32 v{cb}, v{rb}")
    pad(2)
    a(f"v_permlane16_swap_b32 v{ra}, v{ca}")
    a(f"v_permlane16_swap_b32 v{rb}, v{cb}")
    pad(1)
    a(f"v_add_f32 v{ra}, v{ra}, v{ca}")
    a(f"v_add_f32 v{rb}, v{rb}, v{cb}")
    pad(len(fill))
    ln_scale(a, t, ra, rb, True)
    ln_apply2(a, X, X, O, t)
    ln_apply2(a, X + 8, X + 8, O + 4, t)

def tr_addr(a, dst, t, pitch_shift=5):
    a(f"""
    v_bfe_u32 v{dst}, v0, 2, 1
    v_bfe_u32 v{t}, v0, 3, 1
    v_lshl_add_u32 v{dst}, v{t}, 3, v{dst}
    v_bfe_u32 v{t}, v0, 4, 1
    v_lshl_add_u32 v{dst}, v{t}, 2, v{dst}
    v_bfe_u32 v{t}, v0, 5, 1
    v_lshl_add_u32 v{dst}, v{t}, 4, v{dst}
    v_lshlrev_b32 v{dst}, {pitch_shift}, v{dst}
    """)

def tr_reads(a, B, vaddr, nsteps, pitch=32):
    for s in range(nsteps):
        for p in range(2):
            for u in range(2):
                off = (64*s + 32*p + 2*u) * pitch
                a(f"ds_read_b64_tr_b16 {vr(B + 8*s + 4*p + 2*u, 2)}, v{vaddr} offset:{off}")

def chunk_addr(a, dst, t, shift):
    a(f"""
    v_lshrrev_b32 v{dst}, 4, v0
    v_and_b32 v{t}, 1, v0
    v_lshl_add_u32 v{dst}, v{dst}, 1, v{t}
    v_lshlrev_b32 v{dst}, {shift}, v{dst}
    """)

def sparse_idx(a, dst, t):
    a(f"""
    v_and_b32 v{t}, 1, v0
    v_mul_u32_u24 v{dst}, 0xaaaa, v{t}
    v_add_u32 v{dst}, 0x4444, v{dst}
    """)

def sm16(a, D, A, B, idx):
    a(f"v_smfmac_f32_16x16x64_bf16 {vr(D,4)}, {vr(A,4)}, {vr(B,8)}, v{idx}")

C_IDX, C_OP16, C_OP4, C_QA, C_T = 2, 3, 4, 5, 6
C_Q = [8, 12]
C_O = 16
C_S = [32, 48]
C_K = 64
C_V = 128
def qk(a, S, kt, Q):
    a(f"v_mfma_f32_32x32x16_bf16 {vr(S,16)}, {vr(C_K+4*kt,4)}, {vr(Q,4)}, 0")
def pv(a, vf, P):
    a(f"v_smfmac_f32_32x32x32_bf16 {vr(C_O,16)}, {vr(C_V+4*vf,4)}, {vr(P,8)}, v{C_IDX}")
def ex(a, S, lo, hi):
    for i in range(lo, hi):
        a(f"v_exp_f32 v{S+i}, v{S+i}")
def o_out(a, off):
    a(f"ds_write_b128 v{C_OP16}, {vr(C_O,4)} offset:{off}")
    a(f"ds_write_b128 v{C_OP16}, {vr(C_O+4,4)} offset:{off+1024}")
    a(f"ds_write_b32 v{C_OP4}, v{C_O+8} offset:{off}")
def o_zero(a):
    a(f"v_mfma_f32_32x32x8_bf16 {vr(C_O,16)}, v[0:1], v[0:1], 0")
def q_fetch(a, Q, off):
    a(f"ds_read_b32 v{C_T}, v{C_QA} offset:{off+1024}")
    a(f"ds_read_b128 {vr(Q,4)}, v{C_QA} offset:{off}")

PRE = 8
def kv_load(a, t, vk, vv):
    a(f"buffer_load_dwordx4 {vr(C_K+4*t,4)}, v{vk}, {WS}, s8 offen offset:{1024*(t%4)} sc1")
    a(f"buffer_load_dwordx4 {vr(C_V+8*t,4)}, v{vv}, {WS}, s9 offen offset:{1024*(t%4)} sc1")
    if t % 4 == 3 and t != 15:
        a("s_add_u32 s8, s8, 4096")
        a("s_add_u32 s9, s9, 4096")
def v_swap(a, t):
    for j in range(4):
        a(f"v_permlane16_swap_b32 v{C_V+8*t+j}, v{C_V+8*t+4+j}")

def compute_phase(a, par, first=False, tiles=range(16), t1label=None):
    Q, Qn = C_Q[par], C_Q[par ^ 1]
    for t in tiles:
        Sa, Sb = C_S[t & 1], C_S[(t & 1) ^ 1]
        if first == 1:
            issued = 2 * min(16, PRE + t)
            a(f"s_waitcnt vmcnt({max(0, issued - (2*t + 3))})")
            v_swap(a, t)
            if t + PRE < 16:
                a("s_setprio 3")
                kv_load(a, t + PRE, C_QA, C_OP4)
                a("s_setprio 0")
            if t == 15:
                a(f"v_lshlrev_b32 v{C_OP4}, 2, v7")
                a(f"v_add_u32 v{C_OP4}, s11, v{C_OP4}")
        if t == 1:
            if t1label: a(f"{t1label}:")
            pv(a, 0, Sb)
        ex(a, Sa, 0, 4)
        if not (first and t == 0):
            pv(a, (2*t - 1) % 32, Sb + 8)
        ex(a, Sa, 4, 8)
        if t == 15: qk(a, Sb, 0, Qn)
        else: qk(a, Sb, t + 1, Q)
        ex(a, Sa, 8, 12)
        if t == 0:
            if not first: o_out(a, (par ^ 1) * OPB)
            o_zero(a)
        else:
            pv(a, 2*t, Sa)
        ex(a, Sa, 12, 16)
        if t == 8:
            q_fetch(a, Qn, (par + 1) * QS)
        if t == 10:
            retry, ok = a.label("qretry"), a.label("qok")
            a(f"""
            s_waitcnt lgkmcnt(0)
            v_readfirstlane_b32 s4, v{C_T}
            s_cmp_eq_u32 s4, 4
            s_cbranch_scc0 {retry}
            {ok}:
            """)
            a.deferred.append((retry, ok, Qn, (par + 1) * QS))

def emit_deferred(a):
    for retry, ok, Qn, off in a.deferred:
        a(f"{retry}:")
        spin(a)
        a("s_sleep 1")
        q_fetch(a, Qn, off)
        a(f"""
        s_waitcnt lgkmcnt(0)
        v_readfirstlane_b32 s4, v{C_T}
        s_cmp_eq_u32 s4, 4
        s_cbranch_scc0 {retry}
        s_branch {ok}
        """)
    a.deferred = []

H_LANE16, H_IDX, H_AXN, H_AOF, H_QW, H_NRD, H_NPOLL, H_NWR, H_ONE, H_ZERO, H_HI, H_LO, H_TR, H_FV = 1, 2, 3, 4, 5, 6, 7, 8, 9, 10, 12, 13, 14, 15
H_T = 16
H_QD = 28
H_OA = 28
H_XNF = 32
H_ACC = 64
H_M1 = 96
H_KB = 64
H_BQ = 128
H_BO = 192

def h_loads(a, buf, base, sleep=0):
    a(f"s_add_u32 s4, s8, {hex(base)}")
    for q in range(4):
        if sleep: a(f"s_sleep {sleep}")
        for i in range(4):
            a(f"buffer_load_dwordx4 {vr(buf + 16*q + 4*i, 4)}, v{H_LANE16}, {WS}, s4 offen offset:{1024*i} sc1")
        if q != 3:
            a("s_add_u32 s4, s4, 4096")
def h_wq_loads(a, buf, b, sleep=0): h_loads(a, buf, WQF + b*65536, sleep)
def h_wo_loads(a, buf, b): h_loads(a, buf, WOF + b*65536)

def lds_inc(a, off):
    a(f"""
    s_mov_b64 exec, 1
    ds_add_u32 v{H_ZERO}, v{H_ONE} offset:{off}
    s_mov_b64 exec, -1
    """)

def h_qjob(a, buf, b, vm):
    a(f"v_mfma_f32_16x16x16_bf16 {vr(H_QD,4)}, {vr(H_ZERO,2)}, {vr(H_ZERO,2)}, 0")
    a(f"s_waitcnt vmcnt({vm})")
    a("s_nop 4")
    for s in range(8):
        sm16(a, H_QD, H_XNF+4*s, buf+8*s, H_IDX)
    a(f"""
    s_nop 7
    v_add_f32 v{H_QD}, v{H_QD}, v{H_QD+1}
    v_add_f32 v{H_QD+2}, v{H_QD+2}, v{H_QD+3}
    v_cvt_pk_bf16_f32 v{H_QD}, v{H_QD}, v{H_QD+2}
    ds_write_b16 v{H_QW}, v{H_QD} offset:{b*QS}
    ds_write_b16_d16_hi v{H_QW}, v{H_QD} offset:{b*QS+16}
    """)
    lds_inc(a, L_Q + b*QS + 1024)

def h_njob(a, b, sleep):
    p = a.label("npoll")
    T = H_T
    so = (b & 1) * OPB
    a(f"{p}:")
    spin(a)
    a(f"""
    s_sleep {sleep}
    ds_read_b32 v{T+8}, v{H_NPOLL} offset:{so}
    s_waitcnt lgkmcnt(0)
    v_cmp_eq_f32 vcc, -1.0, v{T+8}
    s_cbranch_vccnz {p}
    """)
    for w in range(4):
        a(f"ds_read_b64 {vr(T+2*w,2)}, v{H_NRD} offset:{so + w*OPW}")
    if b < 6:
        a(f"ds_write_b32 v{H_NPOLL}, v{H_M1} offset:{so}")
    a(f"""
    v_add_f32_dpp v{T+8}, v{T+8}, v{T+8} quad_perm:[1,0,3,2] row_mask:0xf bank_mask:0xf
    s_nop 1
    v_add_f32_dpp v{T+8}, v{T+8}, v{T+8} quad_perm:[2,3,0,1] row_mask:0xf bank_mask:0xf
    s_nop 0
    v_rcp_f32 v{T+9}, v{T+8}
    v_min_f32 v{H_LO}, v{H_LO}, v{T+8}
    s_waitcnt lgkmcnt({3 if b < 6 else 2})
    v_add_f32 v{T}, v{T}, v{T+2}
    v_add_f32 v{T+1}, v{T+1}, v{T+3}
    s_waitcnt lgkmcnt({1 if b < 6 else 0})
    v_add_f32 v{T+4}, v{T+4}, v{T+6}
    v_add_f32 v{T+5}, v{T+5}, v{T+7}
    v_add_f32 v{T}, v{T}, v{T+4}
    v_add_f32 v{T+1}, v{T+1}, v{T+5}
    v_maximum3_f32 v{T+8}, |v{T}|, |v{T+1}|, v{T+8}
    v_mul_f32 v{T}, v{T}, v{T+9}
    v_mul_f32 v{T+1}, v{T+1}, v{T+9}
    v_maximum3_f32 v{H_HI}, v{H_HI}, v{T+8}, v{T+8}
    v_cvt_pk_bf16_f32 v{T}, v{T}, v{T+1}
    ds_write_b32 v{H_NWR}, v{T} offset:{b*128}
    """)
    lds_inc(a, L_OFC + 4*b)

def h_ojob(a, buf, b, vm):
    p = a.label("opoll")
    T = H_T
    a(f"{p}:")
    spin(a)
    a(f"""
    ds_read_b32 v{T}, v{H_ZERO} offset:{L_OFC + 4*b}
    ds_read_b128 {vr(H_OA,4)}, v{H_AOF} offset:{128*b}
    s_waitcnt lgkmcnt(0)
    v_cmp_ne_u32 vcc, 4, v{T}
    s_cbranch_vccnz {p}
    s_waitcnt vmcnt({vm})
    """)
    for j in range(8):
        sm16(a, H_ACC+4*j, H_OA, buf+8*j, H_IDX)

def h_naddr(a):
    T = H_T
    a(f"""
    v_lshrrev_b32 v{T}, 3, v0
    s_lshl_b32 s4, s9, 3
    v_add_u32 v{T+1}, s4, v{T}
    v_bfe_u32 v{T+2}, v0, 2, 1
    v_lshlrev_b32 v{H_NRD}, 10, v{T+2}
    v_bfe_u32 v{T+2}, v0, 1, 1
    v_lshl_add_u32 v{H_NRD}, v{T+2}, 9, v{H_NRD}
    v_lshl_add_u32 v{H_NRD}, v{T+1}, 4, v{H_NRD}
    v_and_b32 v{T+2}, 1, v0
    v_lshl_add_u32 v{H_NRD}, v{T+2}, 3, v{H_NRD}
    v_add_u32 v{H_NRD}, {L_OP}, v{H_NRD}
    v_and_b32 v{T+2}, 3, v0
    v_mul_u32_u24 v{H_NPOLL}, {OPW}, v{T+2}
    v_lshl_add_u32 v{H_NPOLL}, v{T+1}, 2, v{H_NPOLL}
    v_add_u32 v{H_NPOLL}, {L_OP + 2048}, v{H_NPOLL}
    """)

def h_sentinels(a, t=16):
    a(f"v_mov_b32 v{t}, -1.0")
    a(f"ds_write_b32 v{H_NPOLL}, v{t}")
    a(f"ds_write_b32 v{H_NPOLL}, v{t} offset:{OPB}")

def reset_counters(a, t, with_q=True, extra=()):
    a(f"""
    v_mov_b32 v{t}, 0
    v_lshlrev_b32 v{t+1}, 2, v0
    v_mul_u32_u24 v{t+2}, {QS}, v0
    s_mov_b64 exec, 0xff
    ds_write_b32 v{t+1}, v{t} offset:{L_OFC}
    """)
    if with_q:
        a("s_mov_b64 exec, 0x1ff")
        a(f"ds_write_b32 v{t+2}, v{t} offset:{L_Q + 1024}")
    for off in extra:
        a(f"ds_write_b32 v{t}, v{t} offset:{off}")
    a("s_mov_b64 exec, -1")

def h_stage_ffn(a):
    lp = a.label("stage")
    a(f"s_cmp_eq_u32 s101, 0")
    a(f"s_cbranch_scc1 {lp}")
    a(f"s_sub_u32 s101, s101, 1")
    for i in range(2):
        a(f"""
        s_mov_b32 m0, s100
        s_add_u32 s100, s100, 1024
        buffer_load_dwordx4 v{H_FV}, s[{S_FF}:{S_FF+3}], s98 offen lds
        s_add_u32 s98, s98, s99
        """)
        if i == 0:
            a(f"s_cmp_eq_u32 s{SISB}, 0")
            a(f"s_cbranch_scc1 {lp}")
    a(f"{lp}:")

def h_finish(a, slow):
    T = H_T
    a(f"""
    v_lshrrev_b32 v{T}, 4, v0
    v_mul_u32_u24 v{T}, {2*XOP}, v{T}
    v_and_b32 v{T+1}, 15, v0
    v_lshl_add_u32 v{T}, v{T+1}, 2, v{T}
    s_lshl_b32 s4, s9, 9
    s_add_u32 s4, s4, {L_XO}
    v_add_u32 v{T}, s4, v{T}
    """)
    if not slow:
        a(f"""
        v_mov_b32 v{T+2}, {f32(2.0**60)}
        v_mov_b32 v{T+3}, {f32(2.0**-20)}
        v_cmp_nle_f32 vcc, v{H_HI}, v{T+2}
        v_cmp_nge_f32 s[4:5], v{H_LO}, v{T+3}
        s_or_b64 vcc, vcc, s[4:5]
        s_and_b64 exec, exec, vcc
        ds_write_b32 v{H_ZERO}, v{H_ONE} offset:{L_BAD}
        s_mov_b64 exec, -1
        """)
    else:
        a("s_nop 7")
    for j in range(8):
        A = H_ACC + 4*j
        a(f"v_add_f32 v{A}, v{A}, v{A+1}")
        a(f"v_add_f32 v{A+2}, v{A+2}, v{A+3}")
        a(f"ds_write_b32 v{T}, v{A} offset:{64*j}")
        a(f"ds_write_b32 v{T}, v{A+2} offset:{64*j + XOP}")

def kv_mm(a, vA):
    D = H_QD
    for s in range(8):
        a(f"ds_read_b128 {vr(H_XNF+4*s,4)}, v{vA} offset:{128*s}")
    for i in range(4):
        a(f"v_mov_b32 v{D+i}, 0")
    a(f"""
    s_cmp_eq_u32 s{SW}, 4
    s_cselect_b32 s10, {f32(KSCALE)}, 1.0
    """)
    for s in range(8):
        a(f"s_waitcnt lgkmcnt({7-s})")
        sm16(a, D, H_XNF+4*s, H_KB+8*s, H_IDX)
    a(f"""
    s_nop 7
    v_add_f32 v{D}, v{D}, v{D+1}
    v_add_f32 v{D+2}, v{D+2}, v{D+3}
    v_mul_f32 v{D}, s10, v{D}
    v_mul_f32 v{D+2}, s10, v{D+2}
    """)

def kv_addr(a):
    t = H_T
    a(f"""
    s_lshl_b32 s4, s9, 10
    s_add_u32 s4, s4, {L_XF}
    v_lshrrev_b32 v{t+1}, 4, v0
    v_bfe_u32 v{t}, v0, 3, 1
    v_lshlrev_b32 v{t+4}, 7, v{t}
    v_lshl_add_u32 v{t+4}, v{t+1}, 5, v{t+4}
    v_and_b32 v{t+2}, 7, v0
    v_lshl_add_u32 v{t+4}, v{t+2}, 1, v{t+4}
    v_lshlrev_b32 v{t+7}, 9, v{t}
    v_lshl_add_u32 v{t+7}, v{t+2}, 4, v{t+7}
    v_and_b32 v{t+2}, 15, v0
    v_lshlrev_b32 v{t+2}, 4, v{t+2}
    v_lshl_add_u32 v{t+3}, v{t+1}, 2, v{t+2}
    s_cmp_eq_u32 s{SW}, 4
    s_cselect_b64 vcc, -1, 0
    s_cselect_b32 s5, 16, 2
    v_cndmask_b32 v{t+4}, v{t+3}, v{t+4}, vcc
    v_cndmask_b32 v{t+7}, v{t+2}, v{t+7}, vcc
    v_add_u32 v{t+4}, s4, v{t+4}
    v_add_u32 v{t+5}, s5, v{t+4}
    v_add_u32 v{t+6}, s4, v{t+2}
    """)

def kv_store(a, layer_out):
    D, t = H_QD, H_T
    base = KF0 + layer_out * 0x20000
    a(f"""
    v_cvt_pk_bf16_f32 v{D}, v{D}, v{D+2}
    ds_write_b16 v{t+4}, v{D}
    ds_write_b16_d16_hi v{t+5}, v{D}
    ds_read_b128 {vr(t,4)}, v{t+6}
    s_lshr_b32 s4, s{SG}, 2
    s_lshl_b32 s4, s4, 10
    s_and_b32 s5, s{SG}, 3
    s_lshl_b32 s5, s5, 7
    s_add_u32 s4, s4, s5
    s_lshl_b32 s5, s{SG}, 8
    s_add_u32 s5, s5, 0x10000
    s_cmp_eq_u32 s{SW}, 4
    s_cselect_b32 s4, s4, s5
    s_add_u32 s4, s4, {hex(base)}
    s_mov_b64 exec, 0xffff
    s_waitcnt lgkmcnt(0)
    buffer_store_dwordx4 {vr(t,4)}, v{t+7}, {WS}, s4 offen sc1
    s_mov_b64 exec, -1
    """)

def wait_init(a, t):
    p = a.label("winit")
    a(f"{p}:")
    spin(a)
    a(f"""
    buffer_load_dword v{t}, off, s[{S_DBG}:{S_DBG+3}], 0 sc1
    s_waitcnt vmcnt(0)
    v_cmp_eq_u32 vcc, 0, v{t}
    s_cbranch_vccnz {p}
    """)

def publish(a, t, last, arr, need_init, cnt=None):
    sk = a.label("npub")
    a(f"""
    v_mov_b32 v{t}, 0
    v_mov_b32 v{t+1}, 1
    s_waitcnt vmcnt(0)
    s_mov_b64 exec, 1
    ds_add_rtn_u32 v{t+2}, v{t}, v{t+1} offset:{cnt or L_PUB}
    s_waitcnt lgkmcnt(0)
    v_readfirstlane_b32 s4, v{t+2}
    s_cmp_lg_u32 s4, {last}
    s_cbranch_scc1 {sk}
    """)
    if need_init: wait_init(a, t + 2)
    a(f"""
    s_lshl_b32 s4, s{SG}, 6
    s_add_u32 s4, s4, {hex(arr)}
    buffer_store_dword v{t+1}, off, {WS}, s4 sc1
    ds_add_u32 v{t}, v{t+1} offset:{cnt or L_PUB}
    {sk}:
    s_mov_b64 exec, -1
    """)

def pack_pairs(a, d, t):
    a(f"""
    s_nop 1
    v_mov_b32_dpp v{t}, v{d} quad_perm:[1,0,3,2] row_mask:0xf bank_mask:0xf
    v_cvt_pk_bf16_f32 v{d}, v{d}, v{t}
    v_min_u32 v{d}, -2, v{d}
    s_nop 1
    v_mov_b32_dpp v{d+1}, v{d} row_shl:2 row_mask:0xf bank_mask:0xf
    v_mov_b32_dpp v{d+2}, v{d} row_shl:4 row_mask:0xf bank_mask:0xf
    v_mov_b32_dpp v{d+3}, v{d} row_shl:6 row_mask:0xf bank_mask:0xf
    """)

def ffn_b_partial(a):
    p = a.label("hpoll")
    a(f"s_add_u32 s4, s{SLAY}, 1")
    lds_wait(a, 12, L_KST, "s4", 2)
    chunk_addr(a, 12, 13, 6)
    sparse_idx(a, 14, 13)
    a(f"""
    s_lshl_b32 s4, s{SLAY}, 14
    s_lshl_b32 s5, s{SW}, 11
    s_add_u32 s4, s4, s5
    s_add_u32 s4, s4, {hex(A_H)}
    v_mov_b32 v8, 0
    v_mov_b32 v9, 0
    v_mov_b32 v10, 0
    v_mov_b32 v11, 0
    {p}:
    """)
    spin(a)
    for s in range(4):
        a(f"buffer_load_dwordx4 {vr(48+4*s,4)}, v12, {WS}, s4 offen offset:{512*s} sc1")
    a("s_waitcnt vmcnt(0)")
    a("v_max3_u32 v13, v48, v49, v50")
    for i in range(51, 63, 2):
        a(f"v_max3_u32 v13, v{i}, v{i+1}, v13")
    a(f"""
    v_max_u32 v13, v63, v13
    v_cmp_eq_u32 vcc, -1, v13
    s_cbranch_vccnz {p}
    """)
    for s in range(4):
        sm16(a, 8, 48+4*s, 16+8*s, 14)
    a(f"""
    s_lshl_b32 s4, s{SW}, 6
    v_lshlrev_b32 v12, 2, v0
    v_add_u32 v12, s4, v12
    v_mov_b32 v13, 0
    v_mov_b32 v15, 1
    s_nop 2
    v_add_f32 v8, v8, v9
    s_mov_b64 exec, 0xffff
    ds_write_b32 v12, v8 offset:{L_PART}
    s_mov_b64 exec, 1
    ds_add_u32 v13, v15 offset:{L_PCN}
    s_mov_b64 exec, -1
    """)

def ffn_b_frags(a):
    tr_addr(a, 48, 49)
    a(f"""
    v_and_b32 v49, 3, v0
    v_lshl_add_u32 v48, v49, 3, v48
    s_lshl_b32 s4, s{SW}, 13
    s_add_u32 s4, s4, {L_STG}
    v_add_u32 v48, s4, v48
    """)
    tr_reads(a, 16, 48, 4)
    a("s_waitcnt lgkmcnt(0)")

def helper_consts(a):
    T = H_T
    a(f"""
    v_mov_b32 v{H_ZERO}, 0
    v_mov_b32 v{H_ZERO+1}, 0
    v_mov_b32 v{H_ONE}, 1
    v_lshrrev_b32 v{T}, 3, v0
    v_mul_u32_u24 v{H_NWR}, {XP}, v{T}
    v_and_b32 v{T}, 7, v0
    v_lshl_add_u32 v{H_NWR}, v{T}, 2, v{H_NWR}
    s_lshl_b32 s4, s9, 5
    s_add_u32 s4, s4, {L_OF}
    v_add_u32 v{H_NWR}, s4, v{H_NWR}
    """)

def lds_wait(a, t, off, val, sleep=1):
    p = a.label("lw")
    a(f"v_mov_b32 v{t}, 0")
    a(f"{p}:")
    spin(a)
    if sleep: a(f"s_sleep {sleep}")
    a(f"""
    ds_read_b32 v{t+1}, v{t} offset:{off}
    s_waitcnt lgkmcnt(0)
    {'v_cmp_eq_u32 vcc, 0, v%d' % (t+1) if val is None else 'v_cmp_ne_u32 vcc, %s, v%d' % (val, t+1)}
    s_cbranch_vccnz {p}
    """)

def flag_poll(a, vaddr, t, sbase, off=0):
    p = a.label("fp")
    a(f"s_branch {p}x")
    a(f"{p}:")
    spin(a)
    a(f"""
    s_mov_b64 exec, vcc
    s_sleep 2
    {p}x:
    buffer_load_dword v{t}, v{vaddr}, {WS}, s{sbase} offen offset:{off} sc1
    s_waitcnt vmcnt(0)
    v_cmp_eq_u32 vcc, 0, v{t}
    s_cbranch_vccnz {p}
    s_mov_b64 exec, -1
    """)

def c_setup(a, flags):
    a(f"""
    v_and_b32 v4, 15, v0
    v_cmp_eq_u32 vcc, 0, v4
    v_lshlrev_b32 v1, 4, v0
    v_lshlrev_b32 v6, 6, v0
    v_mov_b32 v5, s{SONES}
    v_cndmask_b32 v3, 0, v5, vcc
    v_lshlrev_b32 v4, 4, v4
    v_bfe_u32 v5, v0, 4, 1
    v_lshl_add_u32 v4, v5, 9, v4
    v_bfe_u32 v5, v0, 5, 1
    v_lshl_add_u32 v4, v5, 8, v4
    """)
    for t in range(16):
        for j in range(4):
            a(f"v_mov_b32 v{C_V+8*t+4+j}, v3")
    a(f"""
    s_lshl_b32 s10, s{SW}, 12
    s_add_u32 s10, s10, {hex(flags)}
    s_lshl_b32 s8, s{SW}, 14
    s_add_u32 s8, s8, {hex(KF0 + (0x20000 if flags == A_FLAG1 else 0))}
    s_add_u32 s9, s8, 0x10000
    s_mul_i32 s11, s{SW}, {OPW}
    s_add_u32 s11, s11, {L_OP}
    v_add_u32 v{C_OP16}, s11, v1
    s_add_u32 s11, s11, 2048
    v_mov_b32 v{C_QA}, v1
    v_mov_b32 v7, v0
    v_mov_b32 v{C_IDX}, 0xdddd
    """)

def q0_wait(a):
    w0 = a.label("q0wait")
    a("v_mov_b32 v0, 0")
    a("v_mov_b32 v1, 0")
    a(f"{w0}:")
    spin(a)
    q_fetch(a, C_Q[0], 0)
    a(f"""
    s_waitcnt lgkmcnt(0)
    v_readfirstlane_b32 s4, v{C_T}
    s_cmp_eq_u32 s4, 4
    s_cbranch_scc0 {w0}
    """)

def gen(force_slow=False):
    global H_T
    name = NAME + "_kernel"
    a = Asm(); a.deferred = []
    lab = lambda s: a.label(s)
    end, fin = lab("end"), lab("fin")
    a.end = end
    a(f"s_cmp_ge_u32 s{SG}, 256")
    a(f"s_cbranch_scc1 {end}")
    if STAMPS:
        for i in range(16): a(f"s_mov_b32 s{76+i}, 0")
    stamp(a, 0)
    load_kernargs(a)
    hstart, e0 = lab("hstart"), lab("e0")
    a(f"""
    v_lshrrev_b32 v1, 6, v0
    v_and_b32 v0, 63, v0
    v_readfirstlane_b32 s{SW}, v1
    v_lshlrev_b32 v1, 4, v0
    s_cmp_lg_u32 s{SW}, 7
    s_cbranch_scc1 {e0}
    s_getpc_b64 s[4:5]
    s_lshr_b32 s10, s{SG}, 3
    s_lshl_b32 s10, s10, 10
    v_lshlrev_b32 v2, 7, v0
    v_add_u32 v2, s10, v2
    s_mov_b64 exec, 0xff
    global_load_dword v250, v2, s[4:5]
    s_mov_b64 exec, -1
    """)
    reset_counters(a, 4, True, [L_BAD, L_PUB, L_SYN, L_IDX, L_PCN, L_RAW, L_DUTY, L_XNC, L_KVD, L_KST])
    a(f"""
    {e0}:
    s_mov_b32 s{SSLOW}, 0
    s_mov_b32 s{SBUD}, {BUDGET}
    s_mov_b32 s{SLAY}, 0
    s_mov_b32 s{SONES}, 0x3f803f80
    s_lshl_b32 s{STOK}, s{SG}, 3
    s_add_u32 s{STOK}, s{STOK}, s{SW}
    s_and_b32 s4, s{SG}, 7
    s_lshr_b32 s5, s{SG}, 3
    s_mul_i32 s10, s4, 28
    s_add_u32 s10, s10, s5
    s_lshl_b32 s11, s4, 2
    s_add_u32 s11, s11, s5
    s_sub_u32 s11, s11, 28
    s_cmp_ge_u32 s{SG}, 224
    s_cselect_b32 s{SCH}, s11, s10
    s_cselect_b32 s{SISB}, 1, 0
    v_mov_b32 v{H_FV}, 0
    s_cmp_ge_u32 s{SW}, 4
    s_cbranch_scc1 {hstart}
    """)
    def late_srds():
        srd(a, S_OUT, P_OUT, ROWS_SIZE)
        srd(a, S_WR, P_WR, 1024)
        srd(a, S_DBG, P_DBG, 256)
        srd(a, S_X, P_WD, 1792*1024)
        a(f"""
        s_cmp_eq_u32 s{SW}, 6
        s_cselect_b32 s{S_TA}, s{P_WG}, s{P_WU}
        s_cselect_b32 s{S_TA+1}, s{P_WG+1}, s{P_WU+1}
        s_mov_b32 s{S_TA+2}, {512*3584}
        s_mov_b32 s{S_TA+3}, 0x00020000
        s_cmp_lt_u32 s{SW}, 6
        s_cselect_b32 s{S_FF}, s{P_WG}, s{P_WU}
        s_cselect_b32 s{S_FF+1}, s{P_WG+1}, s{P_WU+1}
        s_cmp_ge_u32 s{SG}, 224
        s_cselect_b32 s{S_FF}, s{P_WD}, s{S_FF}
        s_cselect_b32 s{S_FF+1}, s{P_WD+1}, s{S_FF+1}
        s_mov_b32 s{S_FF+2}, {512*3584}
        s_mov_b32 s{S_FF+3}, 0x00020000
        """)
    htop, epi, slow = lab("htop"), lab("epi"), lab("slow")
    loop, loopb, loopt1 = lab("cloop"), lab("cloopb"), lab("cloopt1")
    a(f"""
    s_setprio 3
    v_lshrrev_b32 v3, 5, v0
    v_and_b32 v2, 31, v0
    v_lshlrev_b32 v2, 4, v2
    v_mul_u32_u24 v8, {XP}, v3
    v_add_u32 v8, v8, v2
    v_lshl_add_u32 v2, v3, 10, v2
    s_add_u32 s8, s{STOK}, s{SW}
    s_lshl_b32 s8, s8, 10
    s_bfe_u32 s9, s{SG}, 0x30004
    s_and_b32 s10, s{SG}, 15
    s_lshr_b32 s11, s{SW}, 1
    s_and_b32 s12, s{SW}, 1
    v_lshlrev_b32 v4, 14, v3
    v_bfe_u32 v5, v0, 4, 1
    v_lshl_add_u32 v4, v5, 12, v4
    v_and_b32 v5, 15, v0
    v_lshl_add_u32 v4, v5, 1, v4
    s_lshl_b32 s4, s9, 16
    s_lshl_b32 s5, s10, 6
    s_add_u32 s4, s4, s5
    s_lshl_b32 s5, s12, 15
    s_add_u32 s4, s4, s5
    s_lshl_b32 s5, s11, 5
    s_add_u32 s4, s4, s5
    s_add_u32 s5, s4, 8192
    s_mov_b32 s{S_X+2}, {ROWS_SIZE}
    s_mov_b32 s{S_X+3}, 0x00020000
    s_mov_b32 s{S_RL+2}, 0x80000
    s_mov_b32 s{S_RL+3}, 0x00020000
    s_cmp_lt_u32 s{SG}, 128
    s_waitcnt lgkmcnt(0)
    s_mov_b32 s{S_X}, s{P_X}
    s_mov_b32 s{S_X+1}, s{P_X+1}
    buffer_load_dwordx4 v[16:19], v2, s[{S_X}:{S_X+3}], s8 offen
    buffer_load_dwordx4 v[20:23], v2, s[{S_X}:{S_X+3}], s8 offen offset:512
    s_cselect_b32 s{S_RL}, s{P_WQ}, s{P_WO}
    s_cselect_b32 s{S_RL+1}, s{P_WQ+1}, s{P_WO+1}
    """)
    for i, (so, off) in enumerate([(4,0),(4,1024),(5,0),(5,1024),(4,2048),(4,3072),(5,2048),(5,3072)]):
        a(f"buffer_load_ushort v{48+i}, v4, s[{S_RL}:{S_RL+3}], s{so} offen offset:{off}")
    a("s_barrier")
    stamp(a, 1)
    a(f"""
    s_lshl_b32 s10, s10, 1
    s_add_u32 s10, s10, s11
    s_lshl_b32 s4, s10, 14
    s_lshl_b32 s5, s9, 11
    s_add_u32 s4, s4, s5
    s_lshl_b32 s5, s9, 16
    s_lshl_b32 s10, s10, 11
    s_add_u32 s5, s5, s10
    s_add_u32 s5, s5, {hex(WOF)}
    s_cmp_lt_u32 s{SG}, 128
    s_cselect_b32 s13, s4, s5
    s_lshl_b32 s12, s12, 10
    s_add_u32 s13, s13, s12
    s_mul_i32 s4, s{SW}, {2*XP}
    v_add_u32 v8, s4, v8
    v_mov_b32 v9, 0
    v_mov_b32 v10, 1
    """)
    srd(a, S_WS, P_WS, WS_SIZE)
    a("s_waitcnt vmcnt(8)")
    stamp(a, 2)
    ln_half(a, 16, 32, 24, 56)
    a(f"""
    ds_write_b128 v8, v[24:27] offset:{L_XN}
    ds_write_b128 v8, v[28:31] offset:{L_XN+512}
    s_mov_b64 exec, 1
    ds_add_u32 v9, v10 offset:{L_XNC}
    s_mov_b64 exec, -1
    ds_write_b128 v8, v[16:19] offset:{L_XR}
    ds_write_b128 v8, v[20:23] offset:{L_XR+512}
    s_waitcnt vmcnt(0)
    """)
    for i in range(4):
        a(f"v_lshl_or_b32 v{48+i}, v{49+2*i}, 16, v{48+2*i}")
    a(f"buffer_store_dwordx4 v[48:51], v1, {WS}, s13 offen sc1")
    late_srds()
    c_setup(a, A_FLAG0)
    wait_init(a, 16)
    publish(a, 16, 6, A_FLAG0, False)
    lds_wait(a, 16, L_PUB, 8)
    stamp(a, 10)
    flag_poll(a, 6, 16, 10)
    stamp(a, 14)
    a(f"""
    s_mov_b64 exec, 1
    ds_add_u32 v9, v10 offset:{L_SYN}
    s_mov_b64 exec, -1
    """)
    for t in range(PRE):
        kv_load(a, t, C_QA, C_OP4)
    a("s_setprio 0")
    stamp(a, 3)
    q0_wait(a)
    stamp(a, 11)
    a(f"s_waitcnt vmcnt({2*PRE - 1})")
    stamp(a, 4)
    stamp(a, 12, True)
    qk(a, C_S[0], 0, C_Q[0])
    a("s_mov_b32 s12, 4")
    a("s_nop 4")
    compute_phase(a, 0, first=1)
    a(f"s_branch {loopb}")
    a(".p2align 6")
    a(f"{loop}:")
    compute_phase(a, 0, t1label=loopt1)
    a(f"{loopb}:")
    compute_phase(a, 1)
    if STAMPS:
        a("s_mov_b32 s81, s82")
        a("s_mov_b32 s82, s83")
        a("s_mov_b32 s83, s84")
        stamp(a, 8)
    a(f"""
    v_add_u32 v{C_QA}, {2*QS}, v{C_QA}
    s_sub_u32 s12, s12, 1
    s_cmp_lg_u32 s12, 0
    s_cbranch_scc1 {loop}
    """)
    pv(a, 31, C_S[1] + 8)
    a("s_nop 11")
    o_out(a, OPB)
    stamp(a, 13, True)
    a("v_mov_b32 v0, v7")
    a(f"s_branch {epi}")
    emit_deferred(a)

    T = H_T
    h67, h7, hraw, hq0, hcon = lab("h67"), lab("h7"), lab("hraw"), lab("hq0"), lab("hcon")
    def h_setup():
        late_srds()
        a(f"""
        v_lshrrev_b32 v{T}, 1, v0
        v_lshlrev_b32 v{T}, 10, v{T}
        v_and_b32 v{T+1}, 1, v0
        v_lshl_add_u32 v{T}, v{T+1}, 4, v{T}
        v_mul_u32_u24 v{H_FV}, 3584, v0
        s_and_b32 s4, s9, 1
        s_mul_i32 s4, s4, {256*3584}
        s_lshl_b32 s5, s{SCH}, 4
        s_add_u32 s4, s4, s5
        s_mul_i32 s5, s9, {14*32768}
        s_lshl_b32 s10, s{SCH}, 5
        s_add_u32 s5, s5, s10
        s_lshl_b32 s10, s9, 12
        s_mul_i32 s11, s9, 14336
        s_mov_b32 s12, {64*3584}
        s_cmp_lg_u32 s{SISB}, 0
        s_cselect_b32 s98, s5, s4
        s_cselect_b32 s99, 0x8000, s12
        s_cselect_b32 s100, s11, s10
        s_cselect_b32 s101, 7, 4
        s_cselect_b64 vcc, -1, 0
        v_cndmask_b32 v{H_FV}, v{H_FV}, v{T}, vcc
        s_add_u32 s100, s100, {L_STG}
        """)
        helper_consts(a)
        sparse_idx(a, H_IDX, T)
        chunk_addr(a, H_AXN, T, 4)
        a(f"""
        v_bfe_u32 v{T}, v0, 1, 3
        v_mul_u32_u24 v{T}, {XP}, v{T}
        v_add_u32 v{H_AXN}, v{H_AXN}, v{T}
        v_add_u32 v{H_AOF}, {L_OF}, v{H_AXN}
        v_add_u32 v{H_AXN}, {L_XN}, v{H_AXN}
        v_bfe_u32 v{H_QW}, v0, 3, 1
        v_lshlrev_b32 v{H_QW}, 9, v{H_QW}
        v_and_b32 v{T}, 7, v0
        v_lshl_add_u32 v{H_QW}, v{T}, 1, v{H_QW}
        v_lshrrev_b32 v{T}, 4, v0
        v_lshl_add_u32 v{H_QW}, v{T}, 5, v{H_QW}
        s_lshl_b32 s4, s9, 7
        v_add_u32 v{H_QW}, s4, v{H_QW}
        """)
        h_naddr(a)
        h_sentinels(a, T)
    hz = lab("hz")
    a(f"""
    {hstart}:
    s_sub_u32 s9, s{SW}, 4
    s_lshl_b32 s8, s9, 14
    s_mov_b32 s{S_WKV+2}, 0x4000
    s_mov_b32 s{S_WKV+3}, 0x00020000
    v_mov_b32 v4, 0
    v_mov_b32 v5, 0
    v_mov_b32 v6, 0
    v_mov_b32 v7, 0
    s_waitcnt lgkmcnt(0)
    """)
    srd(a, S_WS, P_WS, WS_SIZE)
    a(f"""
    s_cmp_lg_u32 s{STOK}, 7
    s_cbranch_scc1 {hz}
    s_setprio 3
    s_mov_b32 s4, {hex(A_FLAG0)}
    """)
    for q in range(4):
        for i in range(4):
            a(f"buffer_store_dwordx4 v[4:7], v1, {WS}, s4 offen offset:{1024*i} sc1")
        a("s_add_u32 s4, s4, 4096")
    a(f"""
    {hz}:
    s_add_u32 s5, s8, {L_WKV}
    s_mov_b32 s4, 0
    s_barrier
    s_cmp_ge_u32 s{SW}, 6
    s_cbranch_scc1 {h67}
    s_setprio 2
    s_cmp_eq_u32 s{SW}, 4
    s_cselect_b32 s{S_WKV}, s{P_WK}, s{P_WV}
    s_cselect_b32 s{S_WKV+1}, s{P_WK+1}, s{P_WV+1}
    """)
    for q in range(4):
        a("s_mov_b32 m0, s5")
        a("s_add_u32 s5, s5, 4096")
        for i in range(4):
            a(f"buffer_load_dwordx4 v1, s[{S_WKV}:{S_WKV+3}], s4 offen offset:{i*1024} lds")
        a("s_add_u32 s4, s4, 4096")
    a(f"""
    s_branch {hcon}
    {h67}:
    s_cmp_eq_u32 s{SW}, 7
    s_cbranch_scc1 {hcon}
    v_lshrrev_b32 v8, 1, v0
    v_cmp_lt_u32 vcc, 2, v8
    v_lshlrev_b32 v8, 14, v8
    s_lshl_b32 s4, s{SG}, 6
    v_cndmask_b32 v28, 0, -1, vcc
    v_cndmask_b32 v29, 0, -1, vcc
    v_cndmask_b32 v30, 0, -1, vcc
    v_cndmask_b32 v31, 0, -1, vcc
    s_add_u32 s4, s4, {hex(SYNC)}
    s_mov_b64 exec, 0x555
    buffer_store_dwordx4 v[28:31], v8, {WS}, s4 offen sc1
    s_mov_b64 exec, -1
    {hcon}:
    """)
    h_setup()
    nokv0, kvd0 = lab("nokv0"), lab("kvd0")
    a(f"s_cmp_ge_u32 s{SW}, 6")
    a(f"s_cbranch_scc1 {nokv0}")
    tr_addr(a, H_TR, T)
    a(f"""
    v_and_b32 v{T}, 3, v0
    v_lshl_add_u32 v{H_TR}, v{T}, 3, v{H_TR}
    s_add_u32 s5, s8, {L_WKV}
    v_add_u32 v{H_TR}, s5, v{H_TR}
    """)
    kv_addr(a)
    a("s_waitcnt vmcnt(0)")
    stamp(a, 1)
    tr_reads(a, H_KB, H_TR, 8)
    lds_wait(a, T, L_XNC, 4, 0)
    stamp(a, 2)
    kv_mm(a, H_AXN)
    kv_store(a, 0)
    publish(a, T + 8, 6, A_FLAG0, False)
    a(f"s_branch {hq0}")
    a(f"""
    {nokv0}:
    s_cmp_lg_u32 s{STOK}, 7
    s_cbranch_scc1 {hraw}
    s_waitcnt vmcnt(0)
    s_mov_b64 exec, 1
    buffer_store_dword v{H_ONE}, off, s[{S_DBG}:{S_DBG+3}], 0 sc1
    s_mov_b64 exec, -1
    s_setprio 0
    {hraw}:
    """)
    stamp(a, 1)
    srd(a, S_RL, P_WQ, 0x80000)
    a(f"""
    v_lshrrev_b32 v{T}, 3, v0
    v_lshlrev_b32 v{T}, 10, v{T}
    v_and_b32 v{T+1}, 7, v0
    v_lshl_add_u32 v{T}, v{T+1}, 4, v{T}
    v_and_b32 v{T+1}, 32, v0
    v_xor_b32 v{T}, v{T}, v{T+1}
    v_xor_b32 v{T+1}, 64, v{T}
    s_and_b32 s4, s{SW}, 1
    s_lshl_b32 s5, s4, 15
    s_add_u32 s5, s5, {L_STG}
    s_lshl_b32 s4, s4, 18
    s_mov_b32 s10, 16
    """)
    rl = lab("rawl")
    a(f"{rl}:")
    for i in range(2):
        a("s_mov_b32 m0, s5")
        a("s_add_u32 s5, s5, 1024")
        a(f"buffer_load_dwordx4 v{T + i}, s[{S_RL}:{S_RL+3}], s4 offen lds")
        a("s_add_u32 s4, s4, 0x2000")
    a(f"""
    s_sub_u32 s10, s10, 1
    s_cmp_lg_u32 s10, 0
    s_cbranch_scc1 {rl}
    s_setprio 2
    s_waitcnt vmcnt(0)
    """)
    stamp(a, 2)
    lds_inc(a, L_RAW)
    a(f"s_cmp_eq_u32 s{SW}, 7")
    a(f"s_cbranch_scc1 {kvd0}")
    publish(a, T, 6, A_FLAG0, False)
    a(f"{kvd0}:")
    lds_wait(a, T, L_XNC, 4, 1)
    a(f"{hq0}:")
    stamp(a, 5)
    tr_addr(a, T + 6, T + 7, 7)
    a(f"""
    v_bfe_u32 v{T+7}, v0, 4, 1
    v_bfe_u32 v{T+8}, v0, 3, 1
    v_lshl_add_u32 v{T+7}, v{T+8}, 1, v{T+7}
    v_xor_b32 v{T+7}, s9, v{T+7}
    v_lshl_add_u32 v{T+6}, v{T+7}, 5, v{T+6}
    v_and_b32 v{T+7}, 3, v0
    v_lshl_add_u32 v{T+6}, v{T+7}, 3, v{T+6}
    v_add_u32 v{T+6}, {L_STG}, v{T+6}
    """)
    lds_wait(a, T, L_RAW, 2)
    tr_reads(a, H_BQ, T + 6, 8, pitch=128)
    a(f"{htop}:")
    stamp(a, 3)
    for s in range(8):
        a(f"ds_read_b128 {vr(H_XNF+4*s,4)}, v{H_AXN} offset:{128*s}")
    a(f"v_mov_b32 v{H_HI}, {'0x7f800000' if force_slow else 0}")
    a(f"v_mov_b32 v{H_LO}, 1.0")
    a(f"v_mov_b32 v{H_M1}, -1.0")
    a("s_waitcnt lgkmcnt(0)")
    h_qjob(a, H_BQ, 0, 16)
    stamp(a, 4)
    for i in range(32):
        a(f"v_mov_b32 v{H_ACC+i}, 0")
    hl1 = lab("hl1")
    a(f"s_cmp_lg_u32 s{SLAY}, 0")
    a(f"s_cbranch_scc1 {hl1}")
    hl2, hl3 = lab("hl2"), lab("hl3")
    a(f"""
    s_cmp_lt_u32 s{SW}, 6
    s_cbranch_scc1 {hl2}
    """)
    lds_wait(a, T, L_PUB, 8)
    a(f"""
    s_and_b32 s4, s{SG}, 7
    s_lshr_b32 s5, s{SG}, 3
    v_lshrrev_b32 v{T+2}, 2, v0
    v_mul_u32_u24 v{T+2}, 3584, v{T+2}
    v_and_b32 v{T+3}, 3, v0
    v_lshl_add_u32 v{T+2}, v{T+3}, 7, v{T+2}
    s_mul_i32 s10, s4, 448
    s_and_b32 s10, s10, 0xffffff80
    s_mul_i32 s11, s5, {16*3584}
    s_add_u32 s10, s10, s11
    buffer_load_dword v{T+4}, v{T+2}, s[{S_TA}:{S_TA+3}], s10 offen
    v_lshlrev_b32 v{T+3}, 10, v0
    s_lshl_b32 s10, s5, 1
    s_and_b32 s11, s{SW}, 1
    s_add_u32 s10, s10, s11
    s_mul_i32 s10, s10, {28*1024}
    s_lshl_b32 s11, s4, 7
    s_add_u32 s10, s10, s11
    s_mov_b64 exec, 0xfffffff
    buffer_load_dword v{T+5}, v{T+3}, s[{S_X}:{S_X+3}], s10 offen
    s_mov_b64 exec, -1
    {hl2}:
    v_lshlrev_b32 v{T+2}, 7, v0
    s_lshr_b32 s5, s{SG}, 3
    s_lshl_b32 s10, s5, 2
    s_add_u32 s10, s10, s9
    s_lshl_b32 s10, s10, 13
    """)
    lds_wait(a, T, L_SYN, 4)
    h_wq_loads(a, H_BO, 1, WQ1_SLEEP)
    if TOUCH: a(f"buffer_load_dword v{T+6}, v{T+2}, {WS}, s10 offen sc1")
    h_qjob(a, H_BO, 1, 1 if TOUCH else 0)
    h_wq_loads(a, H_BQ, 2)
    a(f"s_branch {hl3}")
    a(f"{hl1}:")
    h_wq_loads(a, H_BO, 1)
    h_wq_loads(a, H_BQ, 2)
    h_qjob(a, H_BO, 1, 16)
    a(f"{hl3}:")
    h_wo_loads(a, H_BO, 0)
    for b in range(8):
        vm = 0
        if b + 2 < 8:
            h_qjob(a, H_BQ, b + 2, 16)
            if b + 3 < 8:
                h_wq_loads(a, H_BQ, b + 3)
                vm = 16
        h_njob(a, b, 4 if b < 7 else 0)
        if b == 5:
            lds_inc(a, L_Q + 8*QS + 1024)
        h_ojob(a, H_BO, b, vm)
        if b in (3, 6, 7): stamp(a, {3: 6, 6: 7, 7: 8}[b])
        if b + 1 < 8:
            h_wo_loads(a, H_BO, b + 1)
            h_stage_ffn(a)
        if b == 5:
            sk = lab("l1")
            a(f"s_cmp_lg_u32 s{SLAY}, 0")
            a(f"s_cbranch_scc1 {sk}")
            h_wq_loads(a, H_BQ, 0)
            a(f"{sk}:")
    h_finish(a, False)
    a(f"""
    {epi}:
    v_lshlrev_b32 v16, 4, v0
    buffer_load_dwordx4 v[60:63], v16, s[{S_WR}:{S_WR+3}], 0 offen
    s_mul_i32 s4, s{SW}, {XP}
    v_add_u32 v18, s4, v16
    ds_read_b128 v[20:23], v18 offset:{L_XR}
    s_mul_i32 s4, s{SW}, {XOP}
    s_add_u32 s4, s4, {L_XO}
    v_lshlrev_b32 v17, 5, v0
    v_add_u32 v17, s4, v17
    v_mov_b32 v19, 0
    s_waitcnt lgkmcnt(0)
    """)
    unpack8(a, 40, 20)
    a(f"""
    s_barrier
    ds_read_b32 v19, v19 offset:{L_BAD}
    ds_read_b128 v[32:35], v17
    ds_read_b128 v[36:39], v17 offset:16
    s_waitcnt lgkmcnt(2)
    v_readfirstlane_b32 s4, v19
    s_cmp_gt_u32 s4, s{SSLOW}
    s_cbranch_scc1 {slow}
    s_waitcnt lgkmcnt(0)
    """)
    stamp(a, 9)
    pk_add8(a, 32, 32, 40)
    pack8(a, 20, 32)
    ln_row(a, 20, 32, 40, 24, 48)
    a("s_waitcnt vmcnt(0)")
    for i in range(4):
        a(f"v_dot2_f32_bf16 v30, v{24+i}, v{60+i}, {'0' if i == 0 else 'v30'}")
    fill = L(unpack8, 40, 24) + L(pk_add8, 32, 32, 40) + L(pack8, 56, 32)
    reduce_fill(a, [30], [13], fill, lead=3)
    a(f"""
    v_mov_b32 v30, s13
    v_cvt_pk_bf16_f32 v30, v30, v30
    v_ashrrev_i32 v31, 31, v30
    v_or_b32 v31, 0x80000000, v31
    v_xor_b32 v30, v30, v31
    v_and_b32 v30, 0xffff0000, v30
    s_sub_u32 s4, {2047 + 0x8000}, s{STOK}
    v_or_b32 v30, s4, v30
    s_lshl_b32 s4, s{SW}, 2
    v_mov_b32 v31, s4
    ds_write_b32 v31, v30 offset:{L_KEY}
    ds_write_b128 v18, v[56:59] offset:{L_XR}
    v_and_b32 v31, 7, v0
    v_lshlrev_b32 v31, 2, v31
    s_waitcnt lgkmcnt(0)
    s_barrier
    ds_read_b32 v31, v31 offset:{L_KEY}
    s_lshl_b32 s4, s{SG}, 10
    s_lshl_b32 s5, s{SLAY}, 19
    s_add_u32 s4, s4, s5
    s_add_u32 s4, s4, {hex(CAND)}
    s_add_u32 s5, s4, 0x40000
    s_waitcnt lgkmcnt(0)
    v_cmp_gt_u32 vcc, v31, v30
    s_mov_b32 s11, 0
    """)
    nb, nb2, e1, e2 = lab("notbest"), lab("nb2"), lab("e1"), lab("e2")
    a(f"""
    s_cbranch_vccnz {nb}
    buffer_store_dwordx4 v[24:27], v16, {WS}, s4 offen sc1
    buffer_store_dwordx4 v[20:23], v16, {WS}, s5 offen sc1
    s_mov_b32 s11, 1
    s_branch {e1}
    {nb}:
    s_cmp_eq_u32 s{SLAY}, 0
    s_cbranch_scc1 {e1}
    s_lshl_b32 s4, s{STOK}, 10
    buffer_store_dwordx4 v[56:59], v16, s[{S_OUT}:{S_OUT+3}], s4 offen
    {e1}:
    s_cmp_lg_u32 s{SLAY}, 0
    s_cbranch_scc1 {e2}
    """)
    ln_row(a, 56, 32, 40, 60, 48)
    a(f"""
    ds_write_b128 v18, v[60:63] offset:{L_XN}
    v_mov_b32 v28, 0
    v_mov_b32 v29, 1
    s_mov_b64 exec, 1
    ds_add_u32 v28, v29 offset:{L_XNC}
    s_mov_b64 exec, -1
    {e2}:
    s_cmp_eq_u32 s11, 0
    s_cbranch_scc1 {nb2}
    s_lshl_b32 s4, s{SG}, 6
    s_lshl_b32 s5, s{SLAY}, 14
    s_add_u32 s4, s4, s5
    s_add_u32 s4, s4, {hex(A_KEY)}
    s_waitcnt vmcnt(0)
    s_mov_b64 exec, 1
    buffer_store_dword v30, off, {WS}, s4 sc1
    v_mov_b32 v28, 0
    v_mov_b32 v29, 1
    ds_add_u32 v28, v29 offset:{L_KST}
    s_mov_b64 exec, -1
    {nb2}:
    """)
    stamp(a, 10)
    t_h, t_w7, c_nob1, c_go = lab("th"), lab("tw7"), lab("cnob1"), lab("cgo")
    a(f"s_cmp_ge_u32 s{SW}, 4")
    a(f"s_cbranch_scc1 {t_h}")
    a(f"s_cmp_eq_u32 s{SISB}, 0")
    a(f"s_cbranch_scc1 {c_nob1}")
    ffn_b_frags(a)
    c_l0, c_ld, c_np = lab("cl0"), lab("cld"), lab("cnp")
    a(f"s_cmp_eq_u32 s{SLAY}, 0")
    a(f"s_cbranch_scc1 {c_l0}")
    ffn_b_partial(a)
    a(f"""
    {c_nob1}:
    s_cmp_lg_u32 s{SLAY}, 0
    s_cbranch_scc1 {fin}
    {c_l0}:
    """)
    stamp_layer(a)
    c_setup(a, A_FLAG1)
    a(f"s_cmp_lg_u32 s{SISB}, 0")
    a(f"s_cbranch_scc1 {c_ld}")
    lds_wait(a, 48, L_IDX, None, 1)
    a(f"{c_ld}:")
    lds_wait(a, 48, L_PUB, 11, 1)
    flag_poll(a, 6, 48, 10)
    stamp(a, 3)
    for t in range(16):
        kv_load(a, t, C_QA, C_OP4)
    a(f"""
    v_lshlrev_b32 v{C_OP4}, 2, v0
    v_add_u32 v{C_OP4}, s11, v{C_OP4}
    """)
    for t in range(16):
        a(f"s_waitcnt vmcnt({30 - 2*t})")
        v_swap(a, t)
    stamp(a, 14)
    a(f"""
    v_mov_b32 v48, 0
    v_mov_b32 v49, 1
    s_mov_b64 exec, 1
    ds_add_u32 v48, v49 offset:{L_KVD}
    s_mov_b64 exec, -1
    s_cmp_eq_u32 s{SISB}, 0
    s_cbranch_scc1 {c_np}
    """)
    lds_wait(a, 48, L_KVD, 4, 1)
    ffn_b_partial(a)
    lds_wait(a, 48, L_IDX, None, 1)
    a(f"""
    {c_np}:
    s_mov_b32 s{SLAY}, 1
    s_mov_b32 s{SSLOW}, 0
    v_mov_b32 v21, 0
    ds_read_b32 v21, v21 offset:{L_IDX}
    v_lshrrev_b32 v22, 5, v0
    v_lshlrev_b32 v22, 4, v22
    v_and_b32 v23, 15, v0
    v_lshlrev_b32 v23, 1, v23
    s_waitcnt lgkmcnt(0)
    v_readfirstlane_b32 s4, v21
    s_and_b32 s4, s4, 0x7ff
    s_sub_u32 s4, 2047, s4
    s_and_b32 s5, s4, 31
    s_lshl_b32 s32, 1, s5
    s_mov_b32 s33, s32
    s_bfe_u32 s5, s4, 0x10003
    s_lshl_b32 s5, s5, 5
    s_bfm_b64 s[34:35], 16, s5
    s_and_b32 s5, s4, 1
    s_lshl_b32 s5, s5, 4
    s_lshl_b32 s5, 0xffff, s5
    s_bfe_u32 s10, s4, 0x20001
    """)
    for j in range(4):
        a(f"s_cmp_eq_u32 s10, {j}")
        a(f"s_cselect_b32 s{36+j}, s5, 0")
    a(f"""
    s_lshr_b32 s5, s4, 9
    s_bfe_u32 s13, s4, 0x50004
    s_cmp_lg_u32 s5, s{SW}
    s_cselect_b32 s13, 99, s13
    """)
    a(f"""
    s_barrier
    s_cmp_eq_u32 s13, 99
    s_cbranch_scc1 {c_go}
    ds_read_b128 v[16:19], v22 offset:{L_KVX}
    ds_read_u16 v20, v23 offset:{L_KVX+32}
    s_waitcnt lgkmcnt(0)
    v_lshl_or_b32 v20, v20, 16, v20
    """)
    def ptree(lo, hi):
        if hi - lo == 1:
            f = lo
            a("s_mov_b64 exec, s[32:33]")
            for j in range(4):
                a(f"v_mov_b32 v{C_K+4*(f>>1)+j}, v{16+j}")
            a("s_mov_b64 exec, s[34:35]")
            for j in range(4):
                a(f"v_bfi_b32 v{C_V+4*f+j}, s{36+j}, v20, v{C_V+4*f+j}")
            a("s_mov_b64 exec, -1")
            a(f"s_branch {c_go}")
            return
        mid = (lo + hi) // 2
        up = lab("pt")
        a(f"s_cmp_ge_u32 s13, {mid}")
        a(f"s_cbranch_scc1 {up}")
        ptree(lo, mid)
        a(f"{up}:")
        ptree(mid, hi)
    ptree(0, 32)
    a(f"{c_go}:")
    q0_wait(a)
    stamp(a, 4)
    stamp(a, 12, True)
    qk(a, C_S[0], 0, C_Q[0])
    a("s_mov_b32 s12, 4")
    a("s_nop 10")
    compute_phase(a, 0, first=2, tiles=[0])
    a(f"s_branch {loopt1}")
    t_nkv, t_b, t_fix, t_b3, t_nw, t_d = lab("tnkv"), lab("tb"), lab("tfix"), lab("tb3"), lab("tnw"), lab("td")
    a(f"""
    {t_h}:
    """)
    h_sentinels(a)
    a(f"""
    s_cmp_eq_u32 s{SW}, 7
    s_cbranch_scc1 {t_w7}
    s_cmp_ge_u32 s{SW}, 6
    s_cselect_b32 s4, 1, s{SLAY}
    s_cmp_lg_u32 s4, 0
    s_cbranch_scc1 {t_nkv}
    """)
    tr_reads(a, H_KB, H_TR, 8)
    kv_addr(a)
    lds_wait(a, T, L_XNC, 12, 0)
    kv_mm(a, H_AXN)
    kv_store(a, 1)
    publish(a, T + 8, 9, A_FLAG1, False)
    a(f"{t_nkv}:")
    a(f"""
    {t_b}:
    s_cmp_eq_u32 s{SISB}, 0
    s_cbranch_scc1 {t_fix}
    """)
    ffn_b_frags(a)
    a(f"s_cmp_lg_u32 s{SLAY}, 0")
    a(f"s_cbranch_scc1 {t_b}x")
    lds_wait(a, 48, L_KVD, 4, 1)
    a(f"{t_b}x:")
    ffn_b_partial(a)
    helper_consts(a)
    a(f"""
    {t_fix}:
    s_cmp_lg_u32 s{SLAY}, 0
    s_cbranch_scc1 {fin}
    """)
    a(f"""
    s_cmp_ge_u32 s{SW}, 6
    s_cbranch_scc1 {t_b3}
    """)
    lds_wait(a, T, L_DUTY, None, 2)
    lds_wait(a, T, L_KVD, 4, 1)
    yp, nown = lab("ypoll"), lab("nown")
    a(f"""
    ds_read_b32 v22, v{H_ZERO} offset:{L_IDX}
    v_lshlrev_b32 v20, 6, v0
    s_lshl_b32 s10, s9, 10
    s_add_u32 s10, s10, {L_XF}
    v_add_u32 v23, s10, v{H_LANE16}
    s_waitcnt lgkmcnt(0)
    v_readfirstlane_b32 s{SKEY}, v22
    """)
    chunk_addr(a, 21, 22, 4)
    a(f"""
    v_add_u32 v21, s10, v21
    s_mov_b32 s4, {hex(A_Y)}
    s_mov_b64 vcc, -1
    {yp}:
    """)
    spin(a)
    a(f"""
    s_mov_b64 exec, vcc
    s_sleep 1
    buffer_load_dwordx4 v[16:19], v20, {WS}, s4 offen sc1
    s_waitcnt vmcnt(0)
    v_max3_u32 v22, v16, v17, v18
    v_max_u32 v22, v19, v22
    v_cmp_eq_u32 vcc, -1, v22
    s_cbranch_vccnz {yp}
    s_mov_b64 exec, -1
    """)
    stamp(a, 13)
    ln_row(a, 16, 32, 40, 24, 56)
    a(f"""
    ds_write_b128 v23, v[24:27]
    s_and_b32 s4, s{SKEY}, 0x7ff
    s_sub_u32 s4, 2047, s4
    s_lshr_b32 s5, s4, 3
    s_cmp_lg_u32 s5, s{SG}
    s_cbranch_scc1 {nown}
    s_and_b32 s4, s4, 7
    s_mul_i32 s4, s4, {XP}
    v_add_u32 v20, s4, v{H_LANE16}
    ds_write_b128 v20, v[24:27] offset:{L_XN}
    ds_write_b128 v20, v[16:19] offset:{L_XR}
    {nown}:
    """)
    kv_mm(a, 21)
    a(f"""
    v_cvt_pk_bf16_f32 v{H_QD}, v{H_QD}, v{H_QD}
    s_lshl_b32 s4, s9, 5
    v_lshlrev_b32 v20, 1, v0
    v_add_u32 v20, s4, v20
    s_mov_b64 exec, 0xffff
    ds_write_b16 v20, v{H_QD} offset:{L_KVX}
    s_mov_b64 exec, -1
    {t_b3}:
    s_waitcnt lgkmcnt(0)
    s_barrier
    s_mov_b32 s{SLAY}, 1
    s_mov_b32 s{SSLOW}, 0
    """)
    stamp(a, 14)
    stamp_layer(a)
    a(f"s_branch {htop}")
    kp, w7b, w7j, pp, w7e = lab("kpoll"), lab("w7b"), lab("w7j"), lab("ppoll"), lab("w7e")
    a(f"{t_w7}:")
    reset_counters(a, T, True, [L_BAD])
    a(f"""
    s_cmp_lg_u32 s{SISB}, 0
    s_cbranch_scc1 {kp}x
    """)
    tr_addr(a, 16, 17, 4)
    a(f"""
    v_and_b32 v17, 1, v0
    v_lshl_add_u32 v16, v17, 3, v16
    v_bfe_u32 v17, v0, 1, 1
    v_lshl_add_u32 v16, v17, 13, v16
    v_add_u32 v16, {L_STG}, v16
    """)
    tr_reads(a, H_KB, 16, 8, pitch=16)
    a(f"{kp}x:")
    chunk_addr(a, 17, 18, 4)
    a(f"""
    v_lshlrev_b32 v16, 6, v0
    s_lshl_b32 s4, s{SLAY}, 14
    s_add_u32 s4, s4, {hex(A_KEY)}
    s_add_u32 s5, s4, 4096
    s_add_u32 s10, s4, 8192
    s_add_u32 s11, s4, 12288
    v_mov_b32 v{H_QD}, 0
    v_mov_b32 v{H_QD+1}, 0
    v_mov_b32 v{H_QD+2}, 0
    v_mov_b32 v{H_QD+3}, 0
    s_add_u32 s12, s{SLAY}, 1
    """)
    lds_wait(a, 20, L_KST, "s12", 0)
    a(f"""
    s_mov_b64 vcc, -1
    {kp}:
    """)
    spin(a)
    a(f"""
    s_mov_b64 exec, vcc
    buffer_load_dword v20, v16, {WS}, s4 offen sc1
    buffer_load_dword v21, v16, {WS}, s5 offen sc1
    buffer_load_dword v22, v16, {WS}, s10 offen sc1
    buffer_load_dword v23, v16, {WS}, s11 offen sc1
    s_waitcnt vmcnt(0)
    v_min3_u32 v24, v20, v21, v22
    v_min_u32 v24, v23, v24
    v_cmp_eq_u32 vcc, 0, v24
    s_cbranch_vccnz {kp}
    s_mov_b64 exec, -1
    v_max3_u32 v20, v20, v21, v22
    v_max_u32 v20, v23, v20
    """)
    reduce_fill(a, [20], [SKEY], op="v_max_u32")
    stamp(a, 11)
    a(f"""
    s_and_b32 s12, s{SKEY}, 0x7ff
    s_sub_u32 s12, 2047, s12
    s_lshr_b32 s4, s12, 3
    s_lshl_b32 s4, s4, 10
    s_lshl_b32 s5, s{SLAY}, 19
    s_add_u32 s4, s4, s5
    s_add_u32 s4, s4, {hex(CAND)}
    s_cmp_lg_u32 s{SISB}, 0
    s_cbranch_scc1 {w7b}
    """)
    for s in range(8):
        a(f"buffer_load_dwordx4 {vr(32+4*s,4)}, v17, {WS}, s4 offen offset:{128*s} sc1")
    a(f"""
    v_mov_b32 v20, s{SKEY}
    ds_write_b32 v{H_ZERO}, v20 offset:{L_IDX}
    s_waitcnt lgkmcnt(0)
    """)
    for s in range(8):
        a(f"s_waitcnt vmcnt({7-s})")
        sm16(a, H_QD, 32+4*s, H_KB+8*s, H_IDX)
    D = H_QD
    a(f"""
    v_lshlrev_b32 v19, 1, v0
    s_lshl_b32 s4, s{SLAY}, 14
    s_lshl_b32 s5, s{SCH}, 6
    s_add_u32 s4, s4, s5
    s_add_u32 s4, s4, {hex(A_H)}
    s_nop 2
    v_add_f32 v{D}, v{D}, v{D+1}
    v_cvt_pk_bf16_f32 v{D}, v{D}, v{D}
    v_lshlrev_b32 v{D}, 16, v{D}
    v_mul_f32 v{D+2}, {f32(-LOG2E)}, v{D}
    v_exp_f32 v{D+2}, v{D+2}
    v_mov_b32_dpp v{D+1}, v{D} row_ror:8 row_mask:0xf bank_mask:0xf
    v_add_f32 v{D+2}, 1.0, v{D+2}
    v_rcp_f32 v{D+2}, v{D+2}
    s_nop 0
    v_mul_f32 v{D+2}, v{D}, v{D+2}
    v_cvt_pk_bf16_f32 v{D+2}, v{D+2}, v{D+2}
    v_lshlrev_b32 v{D+2}, 16, v{D+2}
    v_mul_f32 v{D}, v{D+2}, v{D+1}
    """)
    pack_pairs(a, D, D + 1)
    a(f"""
    s_mov_b64 exec, 1
    buffer_store_dwordx4 {vr(D,4)}, off, {WS}, s4 sc1
    s_mov_b64 exec, -1
    s_branch {w7j}
    {w7b}:
    s_lshl_b32 s5, s{SCH}, 5
    s_add_u32 s4, s4, s5
    s_add_u32 s5, s4, 0x40000
    v_and_b32 v19, 14, v0
    v_lshlrev_b32 v19, 1, v19
    buffer_load_dword v21, v19, {WS}, s4 offen sc1
    buffer_load_dword v22, v19, {WS}, s5 offen sc1
    v_mov_b32 v20, s{SKEY}
    ds_write_b32 v{H_ZERO}, v20 offset:{L_IDX}
    s_and_b32 s4, s{SKEY}, 0xffff0000
    s_ashr_i32 s5, s4, 31
    s_not_b32 s5, s5
    s_or_b32 s5, s5, 0x80000000
    s_xor_b32 s4, s4, s5
    s_and_b32 s4, s4, 0xffff0000
    v_mov_b32 v20, s4
    v_mul_f32 v20, {f32(-LOG2E)}, v20
    v_exp_f32 v20, v20
    v_and_b32 v23, 1, v0
    v_add_f32 v20, 1.0, v20
    v_rcp_f32 v20, v20
    v_lshlrev_b32 v23, 4, v23
    v_cvt_pk_bf16_f32 v20, v20, v20
    v_lshlrev_b32 v20, 16, v20
    v_sub_u32 v23, 16, v23
    v_and_b32 v24, 15, v0
    v_lshlrev_b32 v24, 2, v24
    s_mul_i32 s10, s{SLAY}, 7
    s_add_u32 s10, s10, 7
    s_waitcnt vmcnt(0)
    v_lshlrev_b32 v21, v23, v21
    v_lshlrev_b32 v22, v23, v22
    v_and_b32 v21, 0xffff0000, v21
    v_and_b32 v22, 0xffff0000, v22
    {pp}:
    """)
    spin(a)
    a(f"ds_read_b32 v25, v{H_ZERO} offset:{L_PCN}")
    for i in range(7):
        a(f"ds_read_b32 v{32+i}, v24 offset:{L_PART + 64*i}")
    a(f"""
    s_waitcnt lgkmcnt(0)
    v_cmp_ne_u32 vcc, s10, v25
    s_cbranch_vccnz {pp}
    v_add_f32 v32, v32, v33
    v_add_f32 v34, v34, v35
    v_add_f32 v36, v36, v37
    v_add_f32 v32, v32, v34
    v_add_f32 v36, v36, v38
    v_add_f32 v32, v32, v36
    v_cvt_pk_bf16_f32 v32, v32, v32
    v_lshlrev_b32 v32, 16, v32
    v_mul_f32 v32, v32, v20
    v_cvt_pk_bf16_f32 v32, v32, v32
    v_lshlrev_b32 v32, 16, v32
    v_add_f32 v32, v32, v21
    v_cvt_pk_bf16_f32 v32, v32, v32
    v_lshlrev_b32 v32, 16, v32
    v_add_f32 v32, v32, v22
    """)
    pack_pairs(a, 32, 33)
    yo = lab("yout")
    a(f"""
    v_lshlrev_b32 v20, 3, v0
    s_mov_b64 exec, 0x101
    s_cmp_lg_u32 s{SLAY}, 0
    s_cbranch_scc1 {yo}
    s_lshl_b32 s4, s{SCH}, 7
    s_add_u32 s4, s4, {hex(A_Y)}
    buffer_store_dwordx4 v[32:35], v20, {WS}, s4 offen sc1
    s_mov_b64 exec, -1
    s_branch {w7j}
    {yo}:
    s_lshl_b32 s4, s12, 10
    s_lshl_b32 s5, s{SCH}, 5
    s_add_u32 s4, s4, s5
    buffer_store_dwordx4 v[32:35], v19, s[{S_OUT}:{S_OUT+3}], s4 offen
    s_mov_b64 exec, -1
    {w7j}:
    """)
    stamp(a, 12)
    a(f"""
    ds_write_b32 v{H_ZERO}, v{H_ONE} offset:{L_DUTY}
    s_cmp_eq_u32 s{SLAY}, 0
    s_cbranch_scc1 {t_b3}
    s_lshr_b32 s4, s12, 3
    s_cmp_eq_u32 s4, s{SG}
    s_cbranch_scc1 {fin}
    v_and_b32 v20, 7, v0
    v_lshlrev_b32 v20, 2, v20
    ds_read_b32 v20, v20 offset:{L_KEY}
    s_waitcnt lgkmcnt(0)
    """)
    reduce_fill(a, [20], [4], op="v_max_u32")
    a(f"""
    s_and_b32 s4, s4, 0x7ff
    s_sub_u32 s4, 2047, s4
    s_and_b32 s5, s4, 7
    s_mul_i32 s5, s5, {XP}
    v_add_u32 v20, s5, v{H_LANE16}
    ds_read_b128 v[24:27], v20 offset:{L_XR}
    s_lshl_b32 s4, s4, 10
    s_waitcnt lgkmcnt(0)
    buffer_store_dwordx4 v[24:27], v{H_LANE16}, s[{S_OUT}:{S_OUT+3}], s4 offen
    {fin}:
    """)
    stamp_flush(a)
    a(f"{end}:")
    a("s_endpgm")
    hs = lab("hslow")
    a(f"""
    {slow}:
    s_mov_b32 s{SSLOW}, 1
    s_waitcnt vmcnt(0) lgkmcnt(0)
    s_barrier
    s_cmp_ge_u32 s{SW}, 4
    s_cbranch_scc1 {hs}
    v_lshlrev_b32 v{C_QA}, 4, v0
    v_lshlrev_b32 v{C_OP4}, 2, v0
    s_lshl_b32 s4, s{SW}, 8
    s_add_u32 s4, s4, {L_MX}
    v_add_u32 v{C_OP16}, s4, v{C_OP4}
    s_mov_b32 s12, 8
    """)
    l1 = lab("mx")
    a(f"{l1}:")
    a(f"ds_read_b128 {vr(C_Q[0],4)}, v{C_QA}")
    a(f"v_mov_b32 v{C_T}, 0xff800000")
    a("s_waitcnt lgkmcnt(0)")
    for t in range(16):
        qk(a, C_S[0], t, C_Q[0])
        a("s_nop 15")
        for i in range(8):
            a(f"v_max3_f32 v{C_T}, v{C_S[0]+2*i}, v{C_S[0]+2*i+1}, v{C_T}")
    a(f"""
    ds_write_b32 v{C_OP16}, v{C_T}
    v_add_u32 v{C_OP16}, 1024, v{C_OP16}
    v_add_u32 v{C_QA}, {QS}, v{C_QA}
    s_sub_u32 s12, s12, 1
    s_cmp_lg_u32 s12, 0
    s_cbranch_scc1 {l1}
    s_waitcnt lgkmcnt(0)
    s_barrier
    v_lshlrev_b32 v{C_QA}, 4, v0
    s_mul_i32 s4, s{SW}, {OPW}
    s_add_u32 s4, s4, {L_OP}
    v_add_u32 v{C_OP16}, s4, v{C_QA}
    s_add_u32 s4, s4, 2048
    v_add_u32 v{C_OP4}, s4, v{C_OP4}
    v_and_b32 v1, 31, v0
    v_lshlrev_b32 v1, 2, v1
    v_add_u32 v1, {L_MX}, v1
    s_mov_b32 s10, {OPB}
    s_mov_b32 s11, {-OPB}
    s_mov_b32 s12, 8
    """)
    l2 = lab("sl")
    a(f"{l2}:")
    a(f"ds_read_b128 {vr(C_Q[0],4)}, v{C_QA}")
    for i in range(8):
        a(f"ds_read_b32 v{C_S[1]+i}, v1 offset:{128*i}")
    for i in range(16):
        a(f"v_mov_b32 v{C_O+i}, 0")
    a("s_waitcnt lgkmcnt(0)")
    a(f"""
    v_max3_f32 v{C_T}, v{C_S[1]}, v{C_S[1]+1}, v{C_S[1]+2}
    v_max3_f32 v{C_T}, v{C_S[1]+3}, v{C_S[1]+4}, v{C_T}
    v_max3_f32 v{C_T}, v{C_S[1]+5}, v{C_S[1]+6}, v{C_T}
    v_max_f32 v{C_T}, v{C_S[1]+7}, v{C_T}
    """)
    for t in range(16):
        qk(a, C_S[0], t, C_Q[0])
        a("s_nop 15")
        for i in range(16):
            a(f"v_sub_f32 v{C_S[0]+i}, v{C_S[0]+i}, v{C_T}")
        ex(a, C_S[0], 0, 16)
        a("s_nop 1")
        pv(a, 2*t, C_S[0])
        pv(a, 2*t+1, C_S[0]+8)
    a("s_nop 15")
    o_out(a, 0)
    a(f"""
    s_bitcmp0_b32 s12, 0
    s_cselect_b32 s4, s10, s11
    v_add_u32 v{C_OP16}, s4, v{C_OP16}
    v_add_u32 v{C_OP4}, s4, v{C_OP4}
    v_add_u32 v{C_QA}, {QS}, v{C_QA}
    v_add_u32 v1, 1024, v1
    s_waitcnt lgkmcnt(0)
    s_barrier
    s_sub_u32 s12, s12, 1
    s_cmp_lg_u32 s12, 0
    s_cbranch_scc1 {l2}
    s_branch {epi}
    {hs}:
    """)
    h_sentinels(a)
    reset_counters(a, H_T + 4, False)
    for i in range(32):
        a(f"v_mov_b32 v{H_ACC+i}, 0")
    a("s_waitcnt lgkmcnt(0)")
    a("s_barrier")
    for b in range(8):
        h_wo_loads(a, H_BO, b)
        a("s_waitcnt lgkmcnt(0)")
        a("s_barrier")
        h_njob(a, b, 0)
        h_ojob(a, H_BO, b, 0)
    h_finish(a, True)
    a(f"s_branch {epi}")
    return kstart(name) + a.text() + kd(name, 256)

def build(force_slow=False):
    hdr = open("cdna_kernels/" + NAME + ".s.ref").read().split("; Override launch")[0]
    s = hdr + f"; @launch grid=(256,1,1) block=(512,1,1) lds={L_END}\n"
    s += '.amdgcn_target "amdgcn-amd-amdhsa--gfx950"\n'
    s += gen(force_slow)
    return s

if __name__ == "__main__":
    out = sys.argv[1] if len(sys.argv) > 1 else "cdna_kernels/" + NAME + ".s"
    STAMPS = "--stamp" in sys.argv
    open(out, "w").write(build("--slow" in sys.argv))
    print("L_END", L_END)
```

```python
import sys
from common import *

WQF, WOF = 0x000000, 0x080000
KF0 = 0x100000
CAND = 0x140000
SYNC = 0x240000
A_FLAG1, A_KEY, A_H, A_Y, A_FLAG0 = SYNC, SYNC + 0x4000, SYNC + 0xC000, SYNC + 0x14000, SYNC + 0x20000
STAMP = 0x280000
WS_SIZE = 0x400000
ROWS_SIZE = 2048 * 1024
S_WS, S_X, S_OUT, S_WKV, S_WR, S_FF, S_RL, S_DBG = 44, 48, 52, 56, 60, 64, 68, 72
S_TA = S_WKV
WS = f"s[{S_WS}:{S_WS+3}]"
SG, SW, STOK, SSLOW, SBUD, SLAY, SKEY, SCH, SISB, SONES = 2, 3, 6, 7, 14, 15, 42, 43, 96, 95
XP = 1056
QS = 1040
L_Q = 0
L_OFC = 10496
L_KEY = L_OFC + 32
L_BAD = L_KEY + 32
L_PUB = L_BAD + 4
L_SYN = L_BAD + 8
L_IDX = L_BAD + 12
L_PCN = L_BAD + 16
L_RAW = L_BAD + 20
L_DUTY = L_BAD + 24
L_XNC = L_BAD + 28
L_KVD = L_BAD + 32
L_KST = L_BAD + 36
L_KVX = L_BAD + 64
L_PART = 10752
L_XF = L_PART + 512
L_XN = L_XF + 2048
L_XR = L_XN + 8 * XP
L_OF = L_XR + 8 * XP
OPW = 2304
OPB = 4 * OPW
L_OP = L_OF + 8 * XP
XOP = 2080
L_XO = L_OP
L_MX = L_XN
L_STG = L_OP + 2 * OPB
L_WKV = L_STG + 65536
L_END = L_WKV + 32768
assert L_XN % 16 == 0 and L_OP % 16 == 0 and L_WKV % 16 == 0 and L_KVX % 16 == 0 and L_KVX + 64 <= L_PART
assert L_END <= 163840
KSCALE = 0.25 * 1.4426950408889634
LOG2E = 1.4426950408889634

STAMPS = False
DBGSTAMP = False
BUDGET = 0x40000
WQ1_SLEEP = 4
TOUCH = True
def stamp(a, i, cyc=False):
    if not STAMPS: return
    a(f"""
    {'s_memtime' if cyc else 's_memrealtime'} s[92:93]
    s_waitcnt lgkmcnt(0)
    s_mov_b32 s{76+i}, s92
    """)
def stamp_layer(a):
    if not STAMPS: return
    for i in range(16):
        a(f"s_mov_b32 s{16+i}, s{76+i}")
def stamp_flush(a):
    if not STAMPS: return
    stamp(a, 15)
    a(f"""
    s_mov_b64 exec, 1
    s_lshl_b32 s92, s{SG}, 10
    s_lshl_b32 s93, s{SW}, 7
    s_add_u32 s92, s92, s93
    s_add_u32 s92, s92, {hex(STAMP)}
    """)
    for i in range(32):
        a(f"v_mov_b32 v1, s{16+i if i < 16 else 76+i-16}")
        a(f"buffer_store_dword v1, off, {WS}, s92 offset:{4*i}")
    if DBGSTAMP:
        sk = a.label("dbs")
        a(f"s_not_b32 s92, s16")
        a(f"v_mov_b32 v1, s92")
        a(f"buffer_atomic_umax v1, off, s[{S_DBG}:{S_DBG+3}], 0 offset:4")
        a(f"v_mov_b32 v1, s91")
        a(f"buffer_atomic_umax v1, off, s[{S_DBG}:{S_DBG+3}], 0 offset:8")
        a(f"s_cmp_lg_u32 s{SW}, 0")
        a(f"s_cbranch_scc1 {sk}")
        for j, r in enumerate([16, 17, 18, 30, 20, 21, 24, 25, 26, 80, 84, 85, 86]):
            a(f"v_mov_b32 v1, s{r}")
            a(f"buffer_atomic_umax v1, off, s[{S_DBG}:{S_DBG+3}], 0 offset:{12+4*j}")
        a(f"{sk}:")

def spin(a):
    a(f"s_sub_u32 s{SBUD}, s{SBUD}, 1")
    a(f"s_cbranch_scc1 {a.end}")

def reduce_fill(a, regs, sdst, fill=(), op="v_add_f32", lead=2):
    fill = list(fill)
    def pad(n):
        while n > 0 and fill:
            a(fill.pop(0)); n -= 1
        if n > 0: a(f"s_nop {n-1}")
    pad(lead)
    need = max(0, 2 - (len(regs) - 1))
    for st in DPP_STEPS:
        for r in regs:
            a(f"{op}_dpp v{r}, v{r}, v{r} {st}")
        pad(need)
    if need == 0 and len(regs) < 2: pad(1)
    for r, s in zip(regs, sdst):
        a(f"v_readlane_b32 s{s}, v{r}, 63")
    pad(2)
    for f in fill: a(f)

def L(fn, *args):
    t = Asm(); fn(t, *args); return [x.strip() for x in t.l]

def ln_dots(a, P, ra, rb):
    for i in range(4):
        a(f"v_dot2_f32_bf16 v{ra}, v{P+i}, s{SONES}, {'0' if i == 0 else 'v%d' % ra}")
        a(f"v_dot2_f32_bf16 v{rb}, v{P+i}, v{P+i}, {'0' if i == 0 else 'v%d' % rb}")

def ln_scale(a, t, ssum, ssq, vsrc=False):
    m, v, p = t + 2, t, t + 1
    if vsrc:
        a(f"v_mul_f32 v{m}, {f32(1/512)}, v{ssum}")
        a(f"v_mul_f32 v{v}, {f32(1/512)}, v{ssq}")
    else:
        a(f"v_mov_b32 v{p}, {f32(1/512)}")
        a(f"v_mul_f32 v{m}, s{ssum}, v{p}")
        a(f"v_mul_f32 v{v}, s{ssq}, v{p}")
    a(f"""
    v_fma_f32 v{v}, -v{m}, v{m}, v{v}
    v_max_f32 v{v}, 0, v{v}
    v_cvt_pk_bf16_f32 v{p}, v{m}, v{v}
    v_and_b32 v{v}, 0xffff0000, v{p}
    v_add_f32 v{v}, {f32(1e-5)}, v{v}
    v_cvt_pk_bf16_f32 v{v}, v{v}, v{v}
    v_lshlrev_b32 v{v}, 16, v{v}
    v_sqrt_f32 v{v}, v{v}
    v_lshlrev_b32 v{m}, 16, v{p}
    v_cvt_pk_bf16_f32 v{v}, v{v}, v{v}
    v_lshlrev_b32 v{v}, 16, v{v}
    v_rcp_f32 v{v}, v{v}
    s_nop 0
    v_mul_f32 v{m}, -v{m}, v{v}
    """)

def ln_apply2(a, X, D, P, t):
    for i in range(4):
        a(f"v_pk_fma_f32 {vr(D+2*i,2)}, {vr(X+2*i,2)}, {vr(t,2)}, {vr(t+2,2)} op_sel_hi:[1,0,0]")
    pack8(a, P, D)

def pk_add8(a, D, A, B):
    for i in range(4):
        a(f"v_pk_add_f32 {vr(D+2*i,2)}, {vr(A+2*i,2)}, {vr(B+2*i,2)}")

def ln_row(a, P, X, D, O, t):
    ln_dots(a, P, t + 4, t + 5)
    reduce_fill(a, [t + 4, t + 5], [4, 5], L(unpack8, X, P), lead=3)
    ln_scale(a, t, 4, 5)
    ln_apply2(a, X, D, O, t)

def ln_half(a, P, X, O, t):
    ra, rb, ca, cb = t + 4, t + 5, t + 6, t + 7
    for i in range(8):
        a(f"v_dot2_f32_bf16 v{ra}, v{P+i}, s{SONES}, {'0' if i == 0 else 'v%d' % ra}")
        a(f"v_dot2_f32_bf16 v{rb}, v{P+i}, v{P+i}, {'0' if i == 0 else 'v%d' % rb}")
    fill = L(unpack8, X, P) + L(unpack8, X + 8, P + 4)
    def pad(n):
        for _ in range(n): a(fill.pop(0))
    pad(3)
    for st in DPP_STEPS[:4]:
        a(f"v_add_f32_dpp v{ra}, v{ra}, v{ra} {st}")
        a(f"v_add_f32_dpp v{rb}, v{rb}, v{rb} {st}")
        pad(1)
    a(f"v_mov_b32 v{ca}, v{ra}")
    a(f"v_mov_b32 v{cb}, v{rb}")
    pad(2)
    a(f"v_permlane16_swap_b32 v{ra}, v{ca}")
    a(f"v_permlane16_swap_b32 v{rb}, v{cb}")
    pad(1)
    a(f"v_add_f32 v{ra}, v{ra}, v{ca}")
    a(f"v_add_f32 v{rb}, v{rb}, v{cb}")
    pad(len(fill))
    ln_scale(a, t, ra, rb, True)
    ln_apply2(a, X, X, O, t)
    ln_apply2(a, X + 8, X + 8, O + 4, t)

def tr_addr(a, dst, t, pitch_shift=5):
    a(f"""
    v_bfe_u32 v{dst}, v0, 2, 1
    v_bfe_u32 v{t}, v0, 3, 1
    v_lshl_add_u32 v{dst}, v{t}, 3, v{dst}
    v_bfe_u32 v{t}, v0, 4, 1
    v_lshl_add_u32 v{dst}, v{t}, 2, v{dst}
    v_bfe_u32 v{t}, v0, 5, 1
    v_lshl_add_u32 v{dst}, v{t}, 4, v{dst}
    v_lshlrev_b32 v{dst}, {pitch_shift}, v{dst}
    """)

def tr_reads(a, B, vaddr, nsteps, pitch=32):
    for s in range(nsteps):
        for p in range(2):
            for u in range(2):
                off = (64*s + 32*p + 2*u) * pitch
                a(f"ds_read_b64_tr_b16 {vr(B + 8*s + 4*p + 2*u, 2)}, v{vaddr} offset:{off}")

def chunk_addr(a, dst, t, shift):
    a(f"""
    v_lshrrev_b32 v{dst}, 4, v0
    v_and_b32 v{t}, 1, v0
    v_lshl_add_u32 v{dst}, v{dst}, 1, v{t}
    v_lshlrev_b32 v{dst}, {shift}, v{dst}
    """)

def sparse_idx(a, dst, t):
    a(f"""
    v_and_b32 v{t}, 1, v0
    v_mul_u32_u24 v{dst}, 0xaaaa, v{t}
    v_add_u32 v{dst}, 0x4444, v{dst}
    """)

def sm16(a, D, A, B, idx):
    a(f"v_smfmac_f32_16x16x64_bf16 {vr(D,4)}, {vr(A,4)}, {vr(B,8)}, v{idx}")

C_IDX, C_OP16, C_OP4, C_QA, C_T = 2, 3, 4, 5, 6
C_Q = [8, 12]
C_O = 16
C_S = [32, 48]
C_K = 64
C_V = 128
def qk(a, S, kt, Q):
    a(f"v_mfma_f32_32x32x16_bf16 {vr(S,16)}, {vr(C_K+4*kt,4)}, {vr(Q,4)}, 0")
def pv(a, vf, P):
    a(f"v_smfmac_f32_32x32x32_bf16 {vr(C_O,16)}, {vr(C_V+4*vf,4)}, {vr(P,8)}, v{C_IDX}")
def ex(a, S, lo, hi):
    for i in range(lo, hi):
        a(f"v_exp_f32 v{S+i}, v{S+i}")
def o_out(a, off):
    a(f"ds_write_b128 v{C_OP16}, {vr(C_O,4)} offset:{off}")
    a(f"ds_write_b128 v{C_OP16}, {vr(C_O+4,4)} offset:{off+1024}")
    a(f"ds_write_b32 v{C_OP4}, v{C_O+8} offset:{off}")
def o_zero(a):
    a(f"v_mfma_f32_32x32x8_bf16 {vr(C_O,16)}, v[0:1], v[0:1], 0")
def q_fetch(a, Q, off):
    a(f"ds_read_b32 v{C_T}, v{C_QA} offset:{off+1024}")
    a(f"ds_read_b128 {vr(Q,4)}, v{C_QA} offset:{off}")

PRE = 8
def kv_load(a, t, vk, vv):
    a(f"buffer_load_dwordx4 {vr(C_K+4*t,4)}, v{vk}, {WS}, s8 offen offset:{1024*(t%4)} sc1")
    a(f"buffer_load_dwordx4 {vr(C_V+8*t,4)}, v{vv}, {WS}, s9 offen offset:{1024*(t%4)} sc1")
    if t % 4 == 3 and t != 15:
        a("s_add_u32 s8, s8, 4096")
        a("s_add_u32 s9, s9, 4096")
def v_swap(a, t):
    for j in range(4):
        a(f"v_permlane16_swap_b32 v{C_V+8*t+j}, v{C_V+8*t+4+j}")

def compute_phase(a, par, first=False, tiles=range(16), t1label=None):
    Q, Qn = C_Q[par], C_Q[par ^ 1]
    for t in tiles:
        Sa, Sb = C_S[t & 1], C_S[(t & 1) ^ 1]
        if first == 1:
            issued = 2 * min(16, PRE + t)
            a(f"s_waitcnt vmcnt({max(0, issued - (2*t + 3))})")
            v_swap(a, t)
            if t + PRE < 16:
                a("s_setprio 3")
                kv_load(a, t + PRE, C_QA, C_OP4)
                a("s_setprio 0")
            if t == 15:
                a(f"v_lshlrev_b32 v{C_OP4}, 2, v7")
                a(f"v_add_u32 v{C_OP4}, s11, v{C_OP4}")
        if t == 1:
            if t1label: a(f"{t1label}:")
            pv(a, 0, Sb)
        ex(a, Sa, 0, 4)
        if not (first and t == 0):
            pv(a, (2*t - 1) % 32, Sb + 8)
        ex(a, Sa, 4, 8)
        if t == 15: qk(a, Sb, 0, Qn)
        else: qk(a, Sb, t + 1, Q)
        ex(a, Sa, 8, 12)
        if t == 0:
            if not first: o_out(a, (par ^ 1) * OPB)
            o_zero(a)
        else:
            pv(a, 2*t, Sa)
        ex(a, Sa, 12, 16)
        if t == 8:
            q_fetch(a, Qn, (par + 1) * QS)
        if t == 10:
            retry, ok = a.label("qretry"), a.label("qok")
            a(f"""
            s_waitcnt lgkmcnt(0)
            v_readfirstlane_b32 s4, v{C_T}
            s_cmp_eq_u32 s4, 4
            s_cbranch_scc0 {retry}
            {ok}:
            """)
            a.deferred.append((retry, ok, Qn, (par + 1) * QS))

def emit_deferred(a):
    for retry, ok, Qn, off in a.deferred:
        a(f"{retry}:")
        spin(a)
        a("s_sleep 1")
        q_fetch(a, Qn, off)
        a(f"""
        s_waitcnt lgkmcnt(0)
        v_readfirstlane_b32 s4, v{C_T}
        s_cmp_eq_u32 s4, 4
        s_cbranch_scc0 {retry}
        s_branch {ok}
        """)
    a.deferred = []

H_LANE16, H_IDX, H_AXN, H_AOF, H_QW, H_NRD, H_NPOLL, H_NWR, H_ONE, H_ZERO, H_HI, H_LO, H_TR, H_FV = 1, 2, 3, 4, 5, 6, 7, 8, 9, 10, 12, 13, 14, 15
H_T = 16
H_QD = 28
H_OA = 28
H_XNF = 32
H_ACC = 64
H_M1 = 96
H_KB = 64
H_BQ = 128
H_BO = 192

def h_loads(a, buf, base, sleep=0):
    a(f"s_add_u32 s4, s8, {hex(base)}")
    for q in range(4):
        if sleep: a(f"s_sleep {sleep}")
        for i in range(4):
            a(f"buffer_load_dwordx4 {vr(buf + 16*q + 4*i, 4)}, v{H_LANE16}, {WS}, s4 offen offset:{1024*i} sc1")
        if q != 3:
            a("s_add_u32 s4, s4, 4096")
def h_wq_loads(a, buf, b, sleep=0): h_loads(a, buf, WQF + b*65536, sleep)
def h_wo_loads(a, buf, b): h_loads(a, buf, WOF + b*65536)

def lds_inc(a, off):
    a(f"""
    s_mov_b64 exec, 1
    ds_add_u32 v{H_ZERO}, v{H_ONE} offset:{off}
    s_mov_b64 exec, -1
    """)

def h_qjob(a, buf, b, vm):
    a(f"v_mfma_f32_16x16x16_bf16 {vr(H_QD,4)}, {vr(H_ZERO,2)}, {vr(H_ZERO,2)}, 0")
    a(f"s_waitcnt vmcnt({vm})")
    a("s_nop 4")
    for s in range(8):
        sm16(a, H_QD, H_XNF+4*s, buf+8*s, H_IDX)
    a(f"""
    s_nop 7
    v_add_f32 v{H_QD}, v{H_QD}, v{H_QD+1}
    v_add_f32 v{H_QD+2}, v{H_QD+2}, v{H_QD+3}
    v_cvt_pk_bf16_f32 v{H_QD}, v{H_QD}, v{H_QD+2}
    ds_write_b16 v{H_QW}, v{H_QD} offset:{b*QS}
    ds_write_b16_d16_hi v{H_QW}, v{H_QD} offset:{b*QS+16}
    """)
    lds_inc(a, L_Q + b*QS + 1024)

def h_njob(a, b, sleep):
    p = a.label("npoll")
    T = H_T
    so = (b & 1) * OPB
    a(f"{p}:")
    spin(a)
    a(f"""
    s_sleep {sleep}
    ds_read_b32 v{T+8}, v{H_NPOLL} offset:{so}
    s_waitcnt lgkmcnt(0)
    v_cmp_eq_f32 vcc, -1.0, v{T+8}
    s_cbranch_vccnz {p}
    """)
    for w in range(4):
        a(f"ds_read_b64 {vr(T+2*w,2)}, v{H_NRD} offset:{so + w*OPW}")
    if b < 6:
        a(f"ds_write_b32 v{H_NPOLL}, v{H_M1} offset:{so}")
    a(f"""
    v_add_f32_dpp v{T+8}, v{T+8}, v{T+8} quad_perm:[1,0,3,2] row_mask:0xf bank_mask:0xf
    s_nop 1
    v_add_f32_dpp v{T+8}, v{T+8}, v{T+8} quad_perm:[2,3,0,1] row_mask:0xf bank_mask:0xf
    s_nop 0
    v_rcp_f32 v{T+9}, v{T+8}
    v_min_f32 v{H_LO}, v{H_LO}, v{T+8}
    s_waitcnt lgkmcnt({3 if b < 6 else 2})
    v_add_f32 v{T}, v{T}, v{T+2}
    v_add_f32 v{T+1}, v{T+1}, v{T+3}
    s_waitcnt lgkmcnt({1 if b < 6 else 0})
    v_add_f32 v{T+4}, v{T+4}, v{T+6}
    v_add_f32 v{T+5}, v{T+5}, v{T+7}
    v_add_f32 v{T}, v{T}, v{T+4}
    v_add_f32 v{T+1}, v{T+1}, v{T+5}
    v_maximum3_f32 v{T+8}, |v{T}|, |v{T+1}|, v{T+8}
    v_mul_f32 v{T}, v{T}, v{T+9}
    v_mul_f32 v{T+1}, v{T+1}, v{T+9}
    v_maximum3_f32 v{H_HI}, v{H_HI}, v{T+8}, v{T+8}
    v_cvt_pk_bf16_f32 v{T}, v{T}, v{T+1}
    ds_write_b32 v{H_NWR}, v{T} offset:{b*128}
    """)
    lds_inc(a, L_OFC + 4*b)

def h_ojob(a, buf, b, vm):
    p = a.label("opoll")
    T = H_T
    a(f"{p}:")
    spin(a)
    a(f"""
    ds_read_b32 v{T}, v{H_ZERO} offset:{L_OFC + 4*b}
    ds_read_b128 {vr(H_OA,4)}, v{H_AOF} offset:{128*b}
    s_waitcnt lgkmcnt(0)
    v_cmp_ne_u32 vcc, 4, v{T}
    s_cbranch_vccnz {p}
    s_waitcnt vmcnt({vm})
    """)
    for j in range(8):
        sm16(a, H_ACC+4*j, H_OA, buf+8*j, H_IDX)

def h_naddr(a):
    T = H_T
    a(f"""
    v_lshrrev_b32 v{T}, 3, v0
    s_lshl_b32 s4, s9, 3
    v_add_u32 v{T+1}, s4, v{T}
    v_bfe_u32 v{T+2}, v0, 2, 1
    v_lshlrev_b32 v{H_NRD}, 10, v{T+2}
    v_bfe_u32 v{T+2}, v0, 1, 1
    v_lshl_add_u32 v{H_NRD}, v{T+2}, 9, v{H_NRD}
    v_lshl_add_u32 v{H_NRD}, v{T+1}, 4, v{H_NRD}
    v_and_b32 v{T+2}, 1, v0
    v_lshl_add_u32 v{H_NRD}, v{T+2}, 3, v{H_NRD}
    v_add_u32 v{H_NRD}, {L_OP}, v{H_NRD}
    v_and_b32 v{T+2}, 3, v0
    v_mul_u32_u24 v{H_NPOLL}, {OPW}, v{T+2}
    v_lshl_add_u32 v{H_NPOLL}, v{T+1}, 2, v{H_NPOLL}
    v_add_u32 v{H_NPOLL}, {L_OP + 2048}, v{H_NPOLL}
    """)

def h_sentinels(a, t=16):
    a(f"v_mov_b32 v{t}, -1.0")
    a(f"ds_write_b32 v{H_NPOLL}, v{t}")
    a(f"ds_write_b32 v{H_NPOLL}, v{t} offset:{OPB}")

def reset_counters(a, t, with_q=True, extra=()):
    a(f"""
    v_mov_b32 v{t}, 0
    v_lshlrev_b32 v{t+1}, 2, v0
    v_mul_u32_u24 v{t+2}, {QS}, v0
    s_mov_b64 exec, 0xff
    ds_write_b32 v{t+1}, v{t} offset:{L_OFC}
    """)
    if with_q:
        a("s_mov_b64 exec, 0x1ff")
        a(f"ds_write_b32 v{t+2}, v{t} offset:{L_Q + 1024}")
    for off in extra:
        a(f"ds_write_b32 v{t}, v{t} offset:{off}")
    a("s_mov_b64 exec, -1")

def h_stage_ffn(a):
    lp = a.label("stage")
    a(f"s_cmp_eq_u32 s101, 0")
    a(f"s_cbranch_scc1 {lp}")
    a(f"s_sub_u32 s101, s101, 1")
    for i in range(2):
        a(f"""
        s_mov_b32 m0, s100
        s_add_u32 s100, s100, 1024
        buffer_load_dwordx4 v{H_FV}, s[{S_FF}:{S_FF+3}], s98 offen lds
        s_add_u32 s98, s98, s99
        """)
        if i == 0:
            a(f"s_cmp_eq_u32 s{SISB}, 0")
            a(f"s_cbranch_scc1 {lp}")
    a(f"{lp}:")

def h_finish(a, slow):
    T = H_T
    a(f"""
    v_lshrrev_b32 v{T}, 4, v0
    v_mul_u32_u24 v{T}, {2*XOP}, v{T}
    v_and_b32 v{T+1}, 15, v0
    v_lshl_add_u32 v{T}, v{T+1}, 2, v{T}
    s_lshl_b32 s4, s9, 9
    s_add_u32 s4, s4, {L_XO}
    v_add_u32 v{T}, s4, v{T}
    """)
    if not slow:
        a(f"""
        v_mov_b32 v{T+2}, {f32(2.0**60)}
        v_mov_b32 v{T+3}, {f32(2.0**-20)}
        v_cmp_nle_f32 vcc, v{H_HI}, v{T+2}
        v_cmp_nge_f32 s[4:5], v{H_LO}, v{T+3}
        s_or_b64 vcc, vcc, s[4:5]
        s_and_b64 exec, exec, vcc
        ds_write_b32 v{H_ZERO}, v{H_ONE} offset:{L_BAD}
        s_mov_b64 exec, -1
        """)
    else:
        a("s_nop 7")
    for j in range(8):
        A = H_ACC + 4*j
        a(f"v_add_f32 v{A}, v{A}, v{A+1}")
        a(f"v_add_f32 v{A+2}, v{A+2}, v{A+3}")
        a(f"ds_write_b32 v{T}, v{A} offset:{64*j}")
        a(f"ds_write_b32 v{T}, v{A+2} offset:{64*j + XOP}")

def kv_mm(a, vA):
    D = H_QD
    for s in range(8):
        a(f"ds_read_b128 {vr(H_XNF+4*s,4)}, v{vA} offset:{128*s}")
    for i in range(4):
        a(f"v_mov_b32 v{D+i}, 0")
    a(f"""
    s_cmp_eq_u32 s{SW}, 4
    s_cselect_b32 s10, {f32(KSCALE)}, 1.0
    """)
    for s in range(8):
        a(f"s_waitcnt lgkmcnt({7-s})")
        sm16(a, D, H_XNF+4*s, H_KB+8*s, H_IDX)
    a(f"""
    s_nop 7
    v_add_f32 v{D}, v{D}, v{D+1}
    v_add_f32 v{D+2}, v{D+2}, v{D+3}
    v_mul_f32 v{D}, s10, v{D}
    v_mul_f32 v{D+2}, s10, v{D+2}
    """)

def kv_addr(a):
    t = H_T
    a(f"""
    s_lshl_b32 s4, s9, 10
    s_add_u32 s4, s4, {L_XF}
    v_lshrrev_b32 v{t+1}, 4, v0
    v_bfe_u32 v{t}, v0, 3, 1
    v_lshlrev_b32 v{t+4}, 7, v{t}
    v_lshl_add_u32 v{t+4}, v{t+1}, 5, v{t+4}
    v_and_b32 v{t+2}, 7, v0
    v_lshl_add_u32 v{t+4}, v{t+2}, 1, v{t+4}
    v_lshlrev_b32 v{t+7}, 9, v{t}
    v_lshl_add_u32 v{t+7}, v{t+2}, 4, v{t+7}
    v_and_b32 v{t+2}, 15, v0
    v_lshlrev_b32 v{t+2}, 4, v{t+2}
    v_lshl_add_u32 v{t+3}, v{t+1}, 2, v{t+2}
    s_cmp_eq_u32 s{SW}, 4
    s_cselect_b64 vcc, -1, 0
    s_cselect_b32 s5, 16, 2
    v_cndmask_b32 v{t+4}, v{t+3}, v{t+4}, vcc
    v_cndmask_b32 v{t+7}, v{t+2}, v{t+7}, vcc
    v_add_u32 v{t+4}, s4, v{t+4}
    v_add_u32 v{t+5}, s5, v{t+4}
    v_add_u32 v{t+6}, s4, v{t+2}
    """)

def kv_store(a, layer_out):
    D, t = H_QD, H_T
    base = KF0 + layer_out * 0x20000
    a(f"""
    v_cvt_pk_bf16_f32 v{D}, v{D}, v{D+2}
    ds_write_b16 v{t+4}, v{D}
    ds_write_b16_d16_hi v{t+5}, v{D}
    ds_read_b128 {vr(t,4)}, v{t+6}
    s_lshr_b32 s4, s{SG}, 2
    s_lshl_b32 s4, s4, 10
    s_and_b32 s5, s{SG}, 3
    s_lshl_b32 s5, s5, 7
    s_add_u32 s4, s4, s5
    s_lshl_b32 s5, s{SG}, 8
    s_add_u32 s5, s5, 0x10000
    s_cmp_eq_u32 s{SW}, 4
    s_cselect_b32 s4, s4, s5
    s_add_u32 s4, s4, {hex(base)}
    s_mov_b64 exec, 0xffff
    s_waitcnt lgkmcnt(0)
    buffer_store_dwordx4 {vr(t,4)}, v{t+7}, {WS}, s4 offen sc1
    s_mov_b64 exec, -1
    """)

def wait_init(a, t):
    p = a.label("winit")
    a(f"{p}:")
    spin(a)
    a(f"""
    buffer_load_dword v{t}, off, s[{S_DBG}:{S_DBG+3}], 0 sc1
    s_waitcnt vmcnt(0)
    v_cmp_eq_u32 vcc, 0, v{t}
    s_cbranch_vccnz {p}
    """)

def publish(a, t, last, arr, need_init, cnt=None):
    sk = a.label("npub")
    a(f"""
    v_mov_b32 v{t}, 0
    v_mov_b32 v{t+1}, 1
    s_waitcnt vmcnt(0)
    s_mov_b64 exec, 1
    ds_add_rtn_u32 v{t+2}, v{t}, v{t+1} offset:{cnt or L_PUB}
    s_waitcnt lgkmcnt(0)
    v_readfirstlane_b32 s4, v{t+2}
    s_cmp_lg_u32 s4, {last}
    s_cbranch_scc1 {sk}
    """)
    if need_init: wait_init(a, t + 2)
    a(f"""
    s_lshl_b32 s4, s{SG}, 6
    s_add_u32 s4, s4, {hex(arr)}
    buffer_store_dword v{t+1}, off, {WS}, s4 sc1
    ds_add_u32 v{t}, v{t+1} offset:{cnt or L_PUB}
    {sk}:
    s_mov_b64 exec, -1
    """)

def pack_pairs(a, d, t):
    a(f"""
    s_nop 1
    v_mov_b32_dpp v{t}, v{d} quad_perm:[1,0,3,2] row_mask:0xf bank_mask:0xf
    v_cvt_pk_bf16_f32 v{d}, v{d}, v{t}
    v_min_u32 v{d}, -2, v{d}
    s_nop 1
    v_mov_b32_dpp v{d+1}, v{d} row_shl:2 row_mask:0xf bank_mask:0xf
    v_mov_b32_dpp v{d+2}, v{d} row_shl:4 row_mask:0xf bank_mask:0xf
    v_mov_b32_dpp v{d+3}, v{d} row_shl:6 row_mask:0xf bank_mask:0xf
    """)

def ffn_b_partial(a):
    p = a.label("hpoll")
    a(f"s_add_u32 s4, s{SLAY}, 1")
    lds_wait(a, 12, L_KST, "s4", 2)
    chunk_addr(a, 12, 13, 6)
    sparse_idx(a, 14, 13)
    a(f"""
    s_lshl_b32 s4, s{SLAY}, 14
    s_lshl_b32 s5, s{SW}, 11
    s_add_u32 s4, s4, s5
    s_add_u32 s4, s4, {hex(A_H)}
    v_mov_b32 v8, 0
    v_mov_b32 v9, 0
    v_mov_b32 v10, 0
    v_mov_b32 v11, 0
    {p}:
    """)
    spin(a)
    for s in range(4):
        a(f"buffer_load_dwordx4 {vr(48+4*s,4)}, v12, {WS}, s4 offen offset:{512*s} sc1")
    a("s_waitcnt vmcnt(0)")
    a("v_max3_u32 v13, v48, v49, v50")
    for i in range(51, 63, 2):
        a(f"v_max3_u32 v13, v{i}, v{i+1}, v13")
    a(f"""
    v_max_u32 v13, v63, v13
    v_cmp_eq_u32 vcc, -1, v13
    s_cbranch_vccnz {p}
    """)
    for s in range(4):
        sm16(a, 8, 48+4*s, 16+8*s, 14)
    a(f"""
    s_lshl_b32 s4, s{SW}, 6
    v_lshlrev_b32 v12, 2, v0
    v_add_u32 v12, s4, v12
    v_mov_b32 v13, 0
    v_mov_b32 v15, 1
    s_nop 2
    v_add_f32 v8, v8, v9
    s_mov_b64 exec, 0xffff
    ds_write_b32 v12, v8 offset:{L_PART}
    s_mov_b64 exec, 1
    ds_add_u32 v13, v15 offset:{L_PCN}
    s_mov_b64 exec, -1
    """)

def ffn_b_frags(a):
    tr_addr(a, 48, 49)
    a(f"""
    v_and_b32 v49, 3, v0
    v_lshl_add_u32 v48, v49, 3, v48
    s_lshl_b32 s4, s{SW}, 13
    s_add_u32 s4, s4, {L_STG}
    v_add_u32 v48, s4, v48
    """)
    tr_reads(a, 16, 48, 4)
    a("s_waitcnt lgkmcnt(0)")

def helper_consts(a):
    T = H_T
    a(f"""
    v_mov_b32 v{H_ZERO}, 0
    v_mov_b32 v{H_ZERO+1}, 0
    v_mov_b32 v{H_ONE}, 1
    v_lshrrev_b32 v{T}, 3, v0
    v_mul_u32_u24 v{H_NWR}, {XP}, v{T}
    v_and_b32 v{T}, 7, v0
    v_lshl_add_u32 v{H_NWR}, v{T}, 2, v{H_NWR}
    s_lshl_b32 s4, s9, 5
    s_add_u32 s4, s4, {L_OF}
    v_add_u32 v{H_NWR}, s4, v{H_NWR}
    """)

def lds_wait(a, t, off, val, sleep=1):
    p = a.label("lw")
    a(f"v_mov_b32 v{t}, 0")
    a(f"{p}:")
    spin(a)
    if sleep: a(f"s_sleep {sleep}")
    a(f"""
    ds_read_b32 v{t+1}, v{t} offset:{off}
    s_waitcnt lgkmcnt(0)
    {'v_cmp_eq_u32 vcc, 0, v%d' % (t+1) if val is None else 'v_cmp_ne_u32 vcc, %s, v%d' % (val, t+1)}
    s_cbranch_vccnz {p}
    """)

def flag_poll(a, vaddr, t, sbase, off=0):
    p = a.label("fp")
    a(f"s_branch {p}x")
    a(f"{p}:")
    spin(a)
    a(f"""
    s_mov_b64 exec, vcc
    s_sleep 2
    {p}x:
    buffer_load_dword v{t}, v{vaddr}, {WS}, s{sbase} offen offset:{off} sc1
    s_waitcnt vmcnt(0)
    v_cmp_eq_u32 vcc, 0, v{t}
    s_cbranch_vccnz {p}
    s_mov_b64 exec, -1
    """)

def c_setup(a, flags):
    a(f"""
    v_and_b32 v4, 15, v0
    v_cmp_eq_u32 vcc, 0, v4
    v_lshlrev_b32 v1, 4, v0
    v_lshlrev_b32 v6, 6, v0
    v_mov_b32 v5, s{SONES}
    v_cndmask_b32 v3, 0, v5, vcc
    v_lshlrev_b32 v4, 4, v4
    v_bfe_u32 v5, v0, 4, 1
    v_lshl_add_u32 v4, v5, 9, v4
    v_bfe_u32 v5, v0, 5, 1
    v_lshl_add_u32 v4, v5, 8, v4
    """)
    for t in range(16):
        for j in range(4):
            a(f"v_mov_b32 v{C_V+8*t+4+j}, v3")
    a(f"""
    s_lshl_b32 s10, s{SW}, 12
    s_add_u32 s10, s10, {hex(flags)}
    s_lshl_b32 s8, s{SW}, 14
    s_add_u32 s8, s8, {hex(KF0 + (0x20000 if flags == A_FLAG1 else 0))}
    s_add_u32 s9, s8, 0x10000
    s_mul_i32 s11, s{SW}, {OPW}
    s_add_u32 s11, s11, {L_OP}
    v_add_u32 v{C_OP16}, s11, v1
    s_add_u32 s11, s11, 2048
    v_mov_b32 v{C_QA}, v1
    v_mov_b32 v7, v0
    v_mov_b32 v{C_IDX}, 0xdddd
    """)

def q0_wait(a):
    w0 = a.label("q0wait")
    a("v_mov_b32 v0, 0")
    a("v_mov_b32 v1, 0")
    a(f"{w0}:")
    spin(a)
    q_fetch(a, C_Q[0], 0)
    a(f"""
    s_waitcnt lgkmcnt(0)
    v_readfirstlane_b32 s4, v{C_T}
    s_cmp_eq_u32 s4, 4
    s_cbranch_scc0 {w0}
    """)

def gen(force_slow=False):
    global H_T
    name = NAME + "_kernel"
    a = Asm(); a.deferred = []
    lab = lambda s: a.label(s)
    end, fin = lab("end"), lab("fin")
    a.end = end
    a(f"s_cmp_ge_u32 s{SG}, 256")
    a(f"s_cbranch_scc1 {end}")
    if STAMPS:
        for i in range(16): a(f"s_mov_b32 s{76+i}, 0")
    stamp(a, 0)
    load_kernargs(a)
    hstart, e0 = lab("hstart"), lab("e0")
    a(f"""
    v_lshrrev_b32 v1, 6, v0
    v_and_b32 v0, 63, v0
    v_readfirstlane_b32 s{SW}, v1
    v_lshlrev_b32 v1, 4, v0
    s_cmp_lg_u32 s{SW}, 7
    s_cbranch_scc1 {e0}
    s_getpc_b64 s[4:5]
    s_lshr_b32 s10, s{SG}, 3
    s_lshl_b32 s10, s10, 10
    v_lshlrev_b32 v2, 7, v0
    v_add_u32 v2, s10, v2
    s_mov_b64 exec, 0xff
    global_load_dword v250, v2, s[4:5]
    s_mov_b64 exec, -1
    """)
    reset_counters(a, 4, True, [L_BAD, L_PUB, L_SYN, L_IDX, L_PCN, L_RAW, L_DUTY, L_XNC, L_KVD, L_KST])
    a(f"""
    {e0}:
    s_mov_b32 s{SSLOW}, 0
    s_mov_b32 s{SBUD}, {BUDGET}
    s_mov_b32 s{SLAY}, 0
    s_mov_b32 s{SONES}, 0x3f803f80
    s_lshl_b32 s{STOK}, s{SG}, 3
    s_add_u32 s{STOK}, s{STOK}, s{SW}
    s_and_b32 s4, s{SG}, 7
    s_lshr_b32 s5, s{SG}, 3
    s_mul_i32 s10, s4, 28
    s_add_u32 s10, s10, s5
    s_lshl_b32 s11, s4, 2
    s_add_u32 s11, s11, s5
    s_sub_u32 s11, s11, 28
    s_cmp_ge_u32 s{SG}, 224
    s_cselect_b32 s{SCH}, s11, s10
    s_cselect_b32 s{SISB}, 1, 0
    v_mov_b32 v{H_FV}, 0
    s_cmp_ge_u32 s{SW}, 4
    s_cbranch_scc1 {hstart}
    """)
    def late_srds():
        srd(a, S_OUT, P_OUT, ROWS_SIZE)
        srd(a, S_WR, P_WR, 1024)
        srd(a, S_DBG, P_DBG, 256)
        srd(a, S_X, P_WD, 1792*1024)
        a(f"""
        s_cmp_eq_u32 s{SW}, 6
        s_cselect_b32 s{S_TA}, s{P_WG}, s{P_WU}
        s_cselect_b32 s{S_TA+1}, s{P_WG+1}, s{P_WU+1}
        s_mov_b32 s{S_TA+2}, {512*3584}
        s_mov_b32 s{S_TA+3}, 0x00020000
        s_cmp_lt_u32 s{SW}, 6
        s_cselect_b32 s{S_FF}, s{P_WG}, s{P_WU}
        s_cselect_b32 s{S_FF+1}, s{P_WG+1}, s{P_WU+1}
        s_cmp_ge_u32 s{SG}, 224
        s_cselect_b32 s{S_FF}, s{P_WD}, s{S_FF}
        s_cselect_b32 s{S_FF+1}, s{P_WD+1}, s{S_FF+1}
        s_mov_b32 s{S_FF+2}, {512*3584}
        s_mov_b32 s{S_FF+3}, 0x00020000
        """)
    htop, epi, slow = lab("htop"), lab("epi"), lab("slow")
    loop, loopb, loopt1 = lab("cloop"), lab("cloopb"), lab("cloopt1")
    a(f"""
    s_setprio 3
    v_lshrrev_b32 v3, 5, v0
    v_and_b32 v2, 31, v0
    v_lshlrev_b32 v2, 4, v2
    v_mul_u32_u24 v8, {XP}, v3
    v_add_u32 v8, v8, v2
    v_lshl_add_u32 v2, v3, 10, v2
    s_add_u32 s8, s{STOK}, s{SW}
    s_lshl_b32 s8, s8, 10
    s_bfe_u32 s9, s{SG}, 0x30004
    s_and_b32 s10, s{SG}, 15
    s_lshr_b32 s11, s{SW}, 1
    s_and_b32 s12, s{SW}, 1
    v_lshlrev_b32 v4, 14, v3
    v_bfe_u32 v5, v0, 4, 1
    v_lshl_add_u32 v4, v5, 12, v4
    v_and_b32 v5, 15, v0
    v_lshl_add_u32 v4, v5, 1, v4
    s_lshl_b32 s4, s9, 16
    s_lshl_b32 s5, s10, 6
    s_add_u32 s4, s4, s5
    s_lshl_b32 s5, s12, 15
    s_add_u32 s4, s4, s5
    s_lshl_b32 s5, s11, 5
    s_add_u32 s4, s4, s5
    s_add_u32 s5, s4, 8192
    s_mov_b32 s{S_X+2}, {ROWS_SIZE}
    s_mov_b32 s{S_X+3}, 0x00020000
    s_mov_b32 s{S_RL+2}, 0x80000
    s_mov_b32 s{S_RL+3}, 0x00020000
    s_cmp_lt_u32 s{SG}, 128
    s_waitcnt lgkmcnt(0)
    s_mov_b32 s{S_X}, s{P_X}
    s_mov_b32 s{S_X+1}, s{P_X+1}
    buffer_load_dwordx4 v[16:19], v2, s[{S_X}:{S_X+3}], s8 offen
    buffer_load_dwordx4 v[20:23], v2, s[{S_X}:{S_X+3}], s8 offen offset:512
    s_cselect_b32 s{S_RL}, s{P_WQ}, s{P_WO}
    s_cselect_b32 s{S_RL+1}, s{P_WQ+1}, s{P_WO+1}
    """)
    for i, (so, off) in enumerate([(4,0),(4,1024),(5,0),(5,1024),(4,2048),(4,3072),(5,2048),(5,3072)]):
        a(f"buffer_load_ushort v{48+i}, v4, s[{S_RL}:{S_RL+3}], s{so} offen offset:{off}")
    a("s_barrier")
    stamp(a, 1)
    a(f"""
    s_lshl_b32 s10, s10, 1
    s_add_u32 s10, s10, s11
    s_lshl_b32 s4, s10, 14
    s_lshl_b32 s5, s9, 11
    s_add_u32 s4, s4, s5
    s_lshl_b32 s5, s9, 16
    s_lshl_b32 s10, s10, 11
    s_add_u32 s5, s5, s10
    s_add_u32 s5, s5, {hex(WOF)}
    s_cmp_lt_u32 s{SG}, 128
    s_cselect_b32 s13, s4, s5
    s_lshl_b32 s12, s12, 10
    s_add_u32 s13, s13, s12
    s_mul_i32 s4, s{SW}, {2*XP}
    v_add_u32 v8, s4, v8
    v_mov_b32 v9, 0
    v_mov_b32 v10, 1
    """)
    srd(a, S_WS, P_WS, WS_SIZE)
    a("s_waitcnt vmcnt(8)")
    stamp(a, 2)
    ln_half(a, 16, 32, 24, 56)
    a(f"""
    ds_write_b128 v8, v[24:27] offset:{L_XN}
    ds_write_b128 v8, v[28:31] offset:{L_XN+512}
    s_mov_b64 exec, 1
    ds_add_u32 v9, v10 offset:{L_XNC}
    s_mov_b64 exec, -1
    ds_write_b128 v8, v[16:19] offset:{L_XR}
    ds_write_b128 v8, v[20:23] offset:{L_XR+512}
    s_waitcnt vmcnt(0)
    """)
    for i in range(4):
        a(f"v_lshl_or_b32 v{48+i}, v{49+2*i}, 16, v{48+2*i}")
    a(f"buffer_store_dwordx4 v[48:51], v1, {WS}, s13 offen sc1")
    late_srds()
    c_setup(a, A_FLAG0)
    wait_init(a, 16)
    publish(a, 16, 6, A_FLAG0, False)
    lds_wait(a, 16, L_PUB, 8)
    stamp(a, 10)
    flag_poll(a, 6, 16, 10)
    stamp(a, 14)
    a(f"""
    s_mov_b64 exec, 1
    ds_add_u32 v9, v10 offset:{L_SYN}
    s_mov_b64 exec, -1
    """)
    for t in range(PRE):
        kv_load(a, t, C_QA, C_OP4)
    a("s_setprio 0")
    stamp(a, 3)
    q0_wait(a)
    stamp(a, 11)
    a(f"s_waitcnt vmcnt({2*PRE - 1})")
    stamp(a, 4)
    stamp(a, 12, True)
    qk(a, C_S[0], 0, C_Q[0])
    a("s_mov_b32 s12, 4")
    a("s_nop 4")
    compute_phase(a, 0, first=1)
    a(f"s_branch {loopb}")
    a(".p2align 6")
    a(f"{loop}:")
    compute_phase(a, 0, t1label=loopt1)
    a(f"{loopb}:")
    compute_phase(a, 1)
    if STAMPS:
        a("s_mov_b32 s81, s82")
        a("s_mov_b32 s82, s83")
        a("s_mov_b32 s83, s84")
        stamp(a, 8)
    a(f"""
    v_add_u32 v{C_QA}, {2*QS}, v{C_QA}
    s_sub_u32 s12, s12, 1
    s_cmp_lg_u32 s12, 0
    s_cbranch_scc1 {loop}
    """)
    pv(a, 31, C_S[1] + 8)
    a("s_nop 11")
    o_out(a, OPB)
    stamp(a, 13, True)
    a("v_mov_b32 v0, v7")
    a(f"s_branch {epi}")
    emit_deferred(a)

    T = H_T
    h67, h7, hraw, hq0, hcon = lab("h67"), lab("h7"), lab("hraw"), lab("hq0"), lab("hcon")
    def h_setup():
        late_srds()
        a(f"""
        v_lshrrev_b32 v{T}, 1, v0
        v_lshlrev_b32 v{T}, 10, v{T}
        v_and_b32 v{T+1}, 1, v0
        v_lshl_add_u32 v{T}, v{T+1}, 4, v{T}
        v_mul_u32_u24 v{H_FV}, 3584, v0
        s_and_b32 s4, s9, 1
        s_mul_i32 s4, s4, {256*3584}
        s_lshl_b32 s5, s{SCH}, 4
        s_add_u32 s4, s4, s5
        s_mul_i32 s5, s9, {14*32768}
        s_lshl_b32 s10, s{SCH}, 5
        s_add_u32 s5, s5, s10
        s_lshl_b32 s10, s9, 12
        s_mul_i32 s11, s9, 14336
        s_mov_b32 s12, {64*3584}
        s_cmp_lg_u32 s{SISB}, 0
        s_cselect_b32 s98, s5, s4
        s_cselect_b32 s99, 0x8000, s12
        s_cselect_b32 s100, s11, s10
        s_cselect_b32 s101, 7, 4
        s_cselect_b64 vcc, -1, 0
        v_cndmask_b32 v{H_FV}, v{H_FV}, v{T}, vcc
        s_add_u32 s100, s100, {L_STG}
        """)
        helper_consts(a)
        sparse_idx(a, H_IDX, T)
        chunk_addr(a, H_AXN, T, 4)
        a(f"""
        v_bfe_u32 v{T}, v0, 1, 3
        v_mul_u32_u24 v{T}, {XP}, v{T}
        v_add_u32 v{H_AXN}, v{H_AXN}, v{T}
        v_add_u32 v{H_AOF}, {L_OF}, v{H_AXN}
        v_add_u32 v{H_AXN}, {L_XN}, v{H_AXN}
        v_bfe_u32 v{H_QW}, v0, 3, 1
        v_lshlrev_b32 v{H_QW}, 9, v{H_QW}
        v_and_b32 v{T}, 7, v0
        v_lshl_add_u32 v{H_QW}, v{T}, 1, v{H_QW}
        v_lshrrev_b32 v{T}, 4, v0
        v_lshl_add_u32 v{H_QW}, v{T}, 5, v{H_QW}
        s_lshl_b32 s4, s9, 7
        v_add_u32 v{H_QW}, s4, v{H_QW}
        """)
        h_naddr(a)
        h_sentinels(a, T)
    hz = lab("hz")
    a(f"""
    {hstart}:
    s_sub_u32 s9, s{SW}, 4
    s_lshl_b32 s8, s9, 14
    s_mov_b32 s{S_WKV+2}, 0x4000
    s_mov_b32 s{S_WKV+3}, 0x00020000
    v_mov_b32 v4, 0
    v_mov_b32 v5, 0
    v_mov_b32 v6, 0
    v_mov_b32 v7, 0
    s_waitcnt lgkmcnt(0)
    """)
    srd(a, S_WS, P_WS, WS_SIZE)
    a(f"""
    s_cmp_lg_u32 s{STOK}, 7
    s_cbranch_scc1 {hz}
    s_setprio 3
    s_mov_b32 s4, {hex(A_FLAG0)}
    """)
    for q in range(4):
        for i in range(4):
            a(f"buffer_store_dwordx4 v[4:7], v1, {WS}, s4 offen offset:{1024*i} sc1")
        a("s_add_u32 s4, s4, 4096")
    a(f"""
    {hz}:
    s_add_u32 s5, s8, {L_WKV}
    s_mov_b32 s4, 0
    s_barrier
    s_cmp_ge_u32 s{SW}, 6
    s_cbranch_scc1 {h67}
    s_setprio 2
    s_cmp_eq_u32 s{SW}, 4
    s_cselect_b32 s{S_WKV}, s{P_WK}, s{P_WV}
    s_cselect_b32 s{S_WKV+1}, s{P_WK+1}, s{P_WV+1}
    """)
    for q in range(4):
        a("s_mov_b32 m0, s5")
        a("s_add_u32 s5, s5, 4096")
        for i in range(4):
            a(f"buffer_load_dwordx4 v1, s[{S_WKV}:{S_WKV+3}], s4 offen offset:{i*1024} lds")
        a("s_add_u32 s4, s4, 4096")
    a(f"""
    s_branch {hcon}
    {h67}:
    s_cmp_eq_u32 s{SW}, 7
    s_cbranch_scc1 {hcon}
    v_lshrrev_b32 v8, 1, v0
    v_cmp_lt_u32 vcc, 2, v8
    v_lshlrev_b32 v8, 14, v8
    s_lshl_b32 s4, s{SG}, 6
    v_cndmask_b32 v28, 0, -1, vcc
    v_cndmask_b32 v29, 0, -1, vcc
    v_cndmask_b32 v30, 0, -1, vcc
    v_cndmask_b32 v31, 0, -1, vcc
    s_add_u32 s4, s4, {hex(SYNC)}
    s_mov_b64 exec, 0x555
    buffer_store_dwordx4 v[28:31], v8, {WS}, s4 offen sc1
    s_mov_b64 exec, -1
    {hcon}:
    """)
    h_setup()
    nokv0, kvd0 = lab("nokv0"), lab("kvd0")
    a(f"s_cmp_ge_u32 s{SW}, 6")
    a(f"s_cbranch_scc1 {nokv0}")
    tr_addr(a, H_TR, T)
    a(f"""
    v_and_b32 v{T}, 3, v0
    v_lshl_add_u32 v{H_TR}, v{T}, 3, v{H_TR}
    s_add_u32 s5, s8, {L_WKV}
    v_add_u32 v{H_TR}, s5, v{H_TR}
    """)
    kv_addr(a)
    a("s_waitcnt vmcnt(0)")
    stamp(a, 1)
    tr_reads(a, H_KB, H_TR, 8)
    lds_wait(a, T, L_XNC, 4, 0)
    stamp(a, 2)
    kv_mm(a, H_AXN)
    kv_store(a, 0)
    publish(a, T + 8, 6, A_FLAG0, False)
    a(f"s_branch {hq0}")
    a(f"""
    {nokv0}:
    s_cmp_lg_u32 s{STOK}, 7
    s_cbranch_scc1 {hraw}
    s_waitcnt vmcnt(0)
    s_mov_b64 exec, 1
    buffer_store_dword v{H_ONE}, off, s[{S_DBG}:{S_DBG+3}], 0 sc1
    s_mov_b64 exec, -1
    s_setprio 0
    {hraw}:
    """)
    stamp(a, 1)
    srd(a, S_RL, P_WQ, 0x80000)
    a(f"""
    v_lshrrev_b32 v{T}, 3, v0
    v_lshlrev_b32 v{T}, 10, v{T}
    v_and_b32 v{T+1}, 7, v0
    v_lshl_add_u32 v{T}, v{T+1}, 4, v{T}
    v_and_b32 v{T+1}, 32, v0
    v_xor_b32 v{T}, v{T}, v{T+1}
    v_xor_b32 v{T+1}, 64, v{T}
    s_and_b32 s4, s{SW}, 1
    s_lshl_b32 s5, s4, 15
    s_add_u32 s5, s5, {L_STG}
    s_lshl_b32 s4, s4, 18
    s_mov_b32 s10, 16
    """)
    rl = lab("rawl")
    a(f"{rl}:")
    for i in range(2):
        a("s_mov_b32 m0, s5")
        a("s_add_u32 s5, s5, 1024")
        a(f"buffer_load_dwordx4 v{T + i}, s[{S_RL}:{S_RL+3}], s4 offen lds")
        a("s_add_u32 s4, s4, 0x2000")
    a(f"""
    s_sub_u32 s10, s10, 1
    s_cmp_lg_u32 s10, 0
    s_cbranch_scc1 {rl}
    s_setprio 2
    s_waitcnt vmcnt(0)
    """)
    stamp(a, 2)
    lds_inc(a, L_RAW)
    a(f"s_cmp_eq_u32 s{SW}, 7")
    a(f"s_cbranch_scc1 {kvd0}")
    publish(a, T, 6, A_FLAG0, False)
    a(f"{kvd0}:")
    lds_wait(a, T, L_XNC, 4, 1)
    a(f"{hq0}:")
    stamp(a, 5)
    tr_addr(a, T + 6, T + 7, 7)
    a(f"""
    v_bfe_u32 v{T+7}, v0, 4, 1
    v_bfe_u32 v{T+8}, v0, 3, 1
    v_lshl_add_u32 v{T+7}, v{T+8}, 1, v{T+7}
    v_xor_b32 v{T+7}, s9, v{T+7}
    v_lshl_add_u32 v{T+6}, v{T+7}, 5, v{T+6}
    v_and_b32 v{T+7}, 3, v0
    v_lshl_add_u32 v{T+6}, v{T+7}, 3, v{T+6}
    v_add_u32 v{T+6}, {L_STG}, v{T+6}
    """)
    lds_wait(a, T, L_RAW, 2)
    tr_reads(a, H_BQ, T + 6, 8, pitch=128)
    a(f"{htop}:")
    stamp(a, 3)
    for s in range(8):
        a(f"ds_read_b128 {vr(H_XNF+4*s,4)}, v{H_AXN} offset:{128*s}")
    a(f"v_mov_b32 v{H_HI}, {'0x7f800000' if force_slow else 0}")
    a(f"v_mov_b32 v{H_LO}, 1.0")
    a(f"v_mov_b32 v{H_M1}, -1.0")
    a("s_waitcnt lgkmcnt(0)")
    h_qjob(a, H_BQ, 0, 16)
    stamp(a, 4)
    for i in range(32):
        a(f"v_mov_b32 v{H_ACC+i}, 0")
    hl1 = lab("hl1")
    a(f"s_cmp_lg_u32 s{SLAY}, 0")
    a(f"s_cbranch_scc1 {hl1}")
    hl2, hl3 = lab("hl2"), lab("hl3")
    a(f"""
    s_cmp_lt_u32 s{SW}, 6
    s_cbranch_scc1 {hl2}
    """)
    lds_wait(a, T, L_PUB, 8)
    a(f"""
    s_and_b32 s4, s{SG}, 7
    s_lshr_b32 s5, s{SG}, 3
    v_lshrrev_b32 v{T+2}, 2, v0
    v_mul_u32_u24 v{T+2}, 3584, v{T+2}
    v_and_b32 v{T+3}, 3, v0
    v_lshl_add_u32 v{T+2}, v{T+3}, 7, v{T+2}
    s_mul_i32 s10, s4, 448
    s_and_b32 s10, s10, 0xffffff80
    s_mul_i32 s11, s5, {16*3584}
    s_add_u32 s10, s10, s11
    buffer_load_dword v{T+4}, v{T+2}, s[{S_TA}:{S_TA+3}], s10 offen
    v_lshlrev_b32 v{T+3}, 10, v0
    s_lshl_b32 s10, s5, 1
    s_and_b32 s11, s{SW}, 1
    s_add_u32 s10, s10, s11
    s_mul_i32 s10, s10, {28*1024}
    s_lshl_b32 s11, s4, 7
    s_add_u32 s10, s10, s11
    s_mov_b64 exec, 0xfffffff
    buffer_load_dword v{T+5}, v{T+3}, s[{S_X}:{S_X+3}], s10 offen
    s_mov_b64 exec, -1
    {hl2}:
    v_lshlrev_b32 v{T+2}, 7, v0
    s_lshr_b32 s5, s{SG}, 3
    s_lshl_b32 s10, s5, 2
    s_add_u32 s10, s10, s9
    s_lshl_b32 s10, s10, 13
    """)
    lds_wait(a, T, L_SYN, 4)
    h_wq_loads(a, H_BO, 1, WQ1_SLEEP)
    if TOUCH: a(f"buffer_load_dword v{T+6}, v{T+2}, {WS}, s10 offen sc1")
    h_qjob(a, H_BO, 1, 1 if TOUCH else 0)
    h_wq_loads(a, H_BQ, 2)
    a(f"s_branch {hl3}")
    a(f"{hl1}:")
    h_wq_loads(a, H_BO, 1)
    h_wq_loads(a, H_BQ, 2)
    h_qjob(a, H_BO, 1, 16)
    a(f"{hl3}:")
    h_wo_loads(a, H_BO, 0)
    for b in range(8):
        vm = 0
        if b + 2 < 8:
            h_qjob(a, H_BQ, b + 2, 16)
            if b + 3 < 8:
                h_wq_loads(a, H_BQ, b + 3)
                vm = 16
        h_njob(a, b, 4 if b < 7 else 0)
        if b == 5:
            lds_inc(a, L_Q + 8*QS + 1024)
        h_ojob(a, H_BO, b, vm)
        if b in (3, 6, 7): stamp(a, {3: 6, 6: 7, 7: 8}[b])
        if b + 1 < 8:
            h_wo_loads(a, H_BO, b + 1)
            h_stage_ffn(a)
        if b == 5:
            sk = lab("l1")
            a(f"s_cmp_lg_u32 s{SLAY}, 0")
            a(f"s_cbranch_scc1 {sk}")
            h_wq_loads(a, H_BQ, 0)
            a(f"{sk}:")
    h_finish(a, False)
    a(f"""
    {epi}:
    v_lshlrev_b32 v16, 4, v0
    buffer_load_dwordx4 v[60:63], v16, s[{S_WR}:{S_WR+3}], 0 offen
    s_mul_i32 s4, s{SW}, {XP}
    v_add_u32 v18, s4, v16
    ds_read_b128 v[20:23], v18 offset:{L_XR}
    s_mul_i32 s4, s{SW}, {XOP}
    s_add_u32 s4, s4, {L_XO}
    v_lshlrev_b32 v17, 5, v0
    v_add_u32 v17, s4, v17
    v_mov_b32 v19, 0
    s_waitcnt lgkmcnt(0)
    """)
    unpack8(a, 40, 20)
    a(f"""
    s_barrier
    ds_read_b32 v19, v19 offset:{L_BAD}
    ds_read_b128 v[32:35], v17
    ds_read_b128 v[36:39], v17 offset:16
    s_waitcnt lgkmcnt(2)
    v_readfirstlane_b32 s4, v19
    s_cmp_gt_u32 s4, s{SSLOW}
    s_cbranch_scc1 {slow}
    s_waitcnt lgkmcnt(0)
    """)
    stamp(a, 9)
    pk_add8(a, 32, 32, 40)
    pack8(a, 20, 32)
    ln_row(a, 20, 32, 40, 24, 48)
    a("s_waitcnt vmcnt(0)")
    for i in range(4):
        a(f"v_dot2_f32_bf16 v30, v{24+i}, v{60+i}, {'0' if i == 0 else 'v30'}")
    fill = L(unpack8, 40, 24) + L(pk_add8, 32, 32, 40) + L(pack8, 56, 32)
    reduce_fill(a, [30], [13], fill, lead=3)
    a(f"""
    v_mov_b32 v30, s13
    v_cvt_pk_bf16_f32 v30, v30, v30
    v_ashrrev_i32 v31, 31, v30
    v_or_b32 v31, 0x80000000, v31
    v_xor_b32 v30, v30, v31
    v_and_b32 v30, 0xffff0000, v30
    s_sub_u32 s4, {2047 + 0x8000}, s{STOK}
    v_or_b32 v30, s4, v30
    s_lshl_b32 s4, s{SW}, 2
    v_mov_b32 v31, s4
    ds_write_b32 v31, v30 offset:{L_KEY}
    ds_write_b128 v18, v[56:59] offset:{L_XR}
    v_and_b32 v31, 7, v0
    v_lshlrev_b32 v31, 2, v31
    s_waitcnt lgkmcnt(0)
    s_barrier
    ds_read_b32 v31, v31 offset:{L_KEY}
    s_lshl_b32 s4, s{SG}, 10
    s_lshl_b32 s5, s{SLAY}, 19
    s_add_u32 s4, s4, s5
    s_add_u32 s4, s4, {hex(CAND)}
    s_add_u32 s5, s4, 0x40000
    s_waitcnt lgkmcnt(0)
    v_cmp_gt_u32 vcc, v31, v30
    s_mov_b32 s11, 0
    """)
    nb, nb2, e1, e2 = lab("notbest"), lab("nb2"), lab("e1"), lab("e2")
    a(f"""
    s_cbranch_vccnz {nb}
    buffer_store_dwordx4 v[24:27], v16, {WS}, s4 offen sc1
    buffer_store_dwordx4 v[20:23], v16, {WS}, s5 offen sc1
    s_mov_b32 s11, 1
    s_branch {e1}
    {nb}:
    s_cmp_eq_u32 s{SLAY}, 0
    s_cbranch_scc1 {e1}
    s_lshl_b32 s4, s{STOK}, 10
    buffer_store_dwordx4 v[56:59], v16, s[{S_OUT}:{S_OUT+3}], s4 offen
    {e1}:
    s_cmp_lg_u32 s{SLAY}, 0
    s_cbranch_scc1 {e2}
    """)
    ln_row(a, 56, 32, 40, 60, 48)
    a(f"""
    ds_write_b128 v18, v[60:63] offset:{L_XN}
    v_mov_b32 v28, 0
    v_mov_b32 v29, 1
    s_mov_b64 exec, 1
    ds_add_u32 v28, v29 offset:{L_XNC}
    s_mov_b64 exec, -1
    {e2}:
    s_cmp_eq_u32 s11, 0
    s_cbranch_scc1 {nb2}
    s_lshl_b32 s4, s{SG}, 6
    s_lshl_b32 s5, s{SLAY}, 14
    s_add_u32 s4, s4, s5
    s_add_u32 s4, s4, {hex(A_KEY)}
    s_waitcnt vmcnt(0)
    s_mov_b64 exec, 1
    buffer_store_dword v30, off, {WS}, s4 sc1
    v_mov_b32 v28, 0
    v_mov_b32 v29, 1
    ds_add_u32 v28, v29 offset:{L_KST}
    s_mov_b64 exec, -1
    {nb2}:
    """)
    stamp(a, 10)
    t_h, t_w7, c_nob1, c_go = lab("th"), lab("tw7"), lab("cnob1"), lab("cgo")
    a(f"s_cmp_ge_u32 s{SW}, 4")
    a(f"s_cbranch_scc1 {t_h}")
    a(f"s_cmp_eq_u32 s{SISB}, 0")
    a(f"s_cbranch_scc1 {c_nob1}")
    ffn_b_frags(a)
    c_l0, c_ld, c_np = lab("cl0"), lab("cld"), lab("cnp")
    a(f"s_cmp_eq_u32 s{SLAY}, 0")
    a(f"s_cbranch_scc1 {c_l0}")
    ffn_b_partial(a)
    a(f"""
    {c_nob1}:
    s_cmp_lg_u32 s{SLAY}, 0
    s_cbranch_scc1 {fin}
    {c_l0}:
    """)
    stamp_layer(a)
    c_setup(a, A_FLAG1)
    a(f"s_cmp_lg_u32 s{SISB}, 0")
    a(f"s_cbranch_scc1 {c_ld}")
    lds_wait(a, 48, L_IDX, None, 1)
    a(f"{c_ld}:")
    lds_wait(a, 48, L_PUB, 11, 1)
    flag_poll(a, 6, 48, 10)
    stamp(a, 3)
    for t in range(16):
        kv_load(a, t, C_QA, C_OP4)
    a(f"""
    v_lshlrev_b32 v{C_OP4}, 2, v0
    v_add_u32 v{C_OP4}, s11, v{C_OP4}
    """)
    for t in range(16):
        a(f"s_waitcnt vmcnt({30 - 2*t})")
        v_swap(a, t)
    stamp(a, 14)
    a(f"""
    v_mov_b32 v48, 0
    v_mov_b32 v49, 1
    s_mov_b64 exec, 1
    ds_add_u32 v48, v49 offset:{L_KVD}
    s_mov_b64 exec, -1
    s_cmp_eq_u32 s{SISB}, 0
    s_cbranch_scc1 {c_np}
    """)
    lds_wait(a, 48, L_KVD, 4, 1)
    ffn_b_partial(a)
    lds_wait(a, 48, L_IDX, None, 1)
    a(f"""
    {c_np}:
    s_mov_b32 s{SLAY}, 1
    s_mov_b32 s{SSLOW}, 0
    v_mov_b32 v21, 0
    ds_read_b32 v21, v21 offset:{L_IDX}
    v_lshrrev_b32 v22, 5, v0
    v_lshlrev_b32 v22, 4, v22
    v_and_b32 v23, 15, v0
    v_lshlrev_b32 v23, 1, v23
    s_waitcnt lgkmcnt(0)
    v_readfirstlane_b32 s4, v21
    s_and_b32 s4, s4, 0x7ff
    s_sub_u32 s4, 2047, s4
    s_and_b32 s5, s4, 31
    s_lshl_b32 s32, 1, s5
    s_mov_b32 s33, s32
    s_bfe_u32 s5, s4, 0x10003
    s_lshl_b32 s5, s5, 5
    s_bfm_b64 s[34:35], 16, s5
    s_and_b32 s5, s4, 1
    s_lshl_b32 s5, s5, 4
    s_lshl_b32 s5, 0xffff, s5
    s_bfe_u32 s10, s4, 0x20001
    """)
    for j in range(4):
        a(f"s_cmp_eq_u32 s10, {j}")
        a(f"s_cselect_b32 s{36+j}, s5, 0")
    a(f"""
    s_lshr_b32 s5, s4, 9
    s_bfe_u32 s13, s4, 0x50004
    s_cmp_lg_u32 s5, s{SW}
    s_cselect_b32 s13, 99, s13
    """)
    a(f"""
    s_barrier
    s_cmp_eq_u32 s13, 99
    s_cbranch_scc1 {c_go}
    ds_read_b128 v[16:19], v22 offset:{L_KVX}
    ds_read_u16 v20, v23 offset:{L_KVX+32}
    s_waitcnt lgkmcnt(0)
    v_lshl_or_b32 v20, v20, 16, v20
    """)
    def ptree(lo, hi):
        if hi - lo == 1:
            f = lo
            a("s_mov_b64 exec, s[32:33]")
            for j in range(4):
                a(f"v_mov_b32 v{C_K+4*(f>>1)+j}, v{16+j}")
            a("s_mov_b64 exec, s[34:35]")
            for j in range(4):
                a(f"v_bfi_b32 v{C_V+4*f+j}, s{36+j}, v20, v{C_V+4*f+j}")
            a("s_mov_b64 exec, -1")
            a(f"s_branch {c_go}")
            return
        mid = (lo + hi) // 2
        up = lab("pt")
        a(f"s_cmp_ge_u32 s13, {mid}")
        a(f"s_cbranch_scc1 {up}")
        ptree(lo, mid)
        a(f"{up}:")
        ptree(mid, hi)
    ptree(0, 32)
    a(f"{c_go}:")
    q0_wait(a)
    stamp(a, 4)
    stamp(a, 12, True)
    qk(a, C_S[0], 0, C_Q[0])
    a("s_mov_b32 s12, 4")
    a("s_nop 10")
    compute_phase(a, 0, first=2, tiles=[0])
    a(f"s_branch {loopt1}")
    t_nkv, t_b, t_fix, t_b3, t_nw, t_d = lab("tnkv"), lab("tb"), lab("tfix"), lab("tb3"), lab("tnw"), lab("td")
    a(f"""
    {t_h}:
    """)
    h_sentinels(a)
    a(f"""
    s_cmp_eq_u32 s{SW}, 7
    s_cbranch_scc1 {t_w7}
    s_cmp_ge_u32 s{SW}, 6
    s_cselect_b32 s4, 1, s{SLAY}
    s_cmp_lg_u32 s4, 0
    s_cbranch_scc1 {t_nkv}
    """)
    tr_reads(a, H_KB, H_TR, 8)
    kv_addr(a)
    lds_wait(a, T, L_XNC, 12, 0)
    kv_mm(a, H_AXN)
    kv_store(a, 1)
    publish(a, T + 8, 9, A_FLAG1, False)
    a(f"{t_nkv}:")
    a(f"""
    {t_b}:
    s_cmp_eq_u32 s{SISB}, 0
    s_cbranch_scc1 {t_fix}
    """)
    ffn_b_frags(a)
    a(f"s_cmp_lg_u32 s{SLAY}, 0")
    a(f"s_cbranch_scc1 {t_b}x")
    lds_wait(a, 48, L_KVD, 4, 1)
    a(f"{t_b}x:")
    ffn_b_partial(a)
    helper_consts(a)
    a(f"""
    {t_fix}:
    s_cmp_lg_u32 s{SLAY}, 0
    s_cbranch_scc1 {fin}
    """)
    a(f"""
    s_cmp_ge_u32 s{SW}, 6
    s_cbranch_scc1 {t_b3}
    """)
    lds_wait(a, T, L_DUTY, None, 2)
    lds_wait(a, T, L_KVD, 4, 1)
    yp, nown = lab("ypoll"), lab("nown")
    a(f"""
    ds_read_b32 v22, v{H_ZERO} offset:{L_IDX}
    v_lshlrev_b32 v20, 6, v0
    s_lshl_b32 s10, s9, 10
    s_add_u32 s10, s10, {L_XF}
    v_add_u32 v23, s10, v{H_LANE16}
    s_waitcnt lgkmcnt(0)
    v_readfirstlane_b32 s{SKEY}, v22
    """)
    chunk_addr(a, 21, 22, 4)
    a(f"""
    v_add_u32 v21, s10, v21
    s_mov_b32 s4, {hex(A_Y)}
    s_mov_b64 vcc, -1
    {yp}:
    """)
    spin(a)
    a(f"""
    s_mov_b64 exec, vcc
    s_sleep 1
    buffer_load_dwordx4 v[16:19], v20, {WS}, s4 offen sc1
    s_waitcnt vmcnt(0)
    v_max3_u32 v22, v16, v17, v18
    v_max_u32 v22, v19, v22
    v_cmp_eq_u32 vcc, -1, v22
    s_cbranch_vccnz {yp}
    s_mov_b64 exec, -1
    """)
    stamp(a, 13)
    ln_row(a, 16, 32, 40, 24, 56)
    a(f"""
    ds_write_b128 v23, v[24:27]
    s_and_b32 s4, s{SKEY}, 0x7ff
    s_sub_u32 s4, 2047, s4
    s_lshr_b32 s5, s4, 3
    s_cmp_lg_u32 s5, s{SG}
    s_cbranch_scc1 {nown}
    s_and_b32 s4, s4, 7
    s_mul_i32 s4, s4, {XP}
    v_add_u32 v20, s4, v{H_LANE16}
    ds_write_b128 v20, v[24:27] offset:{L_XN}
    ds_write_b128 v20, v[16:19] offset:{L_XR}
    {nown}:
    """)
    kv_mm(a, 21)
    a(f"""
    v_cvt_pk_bf16_f32 v{H_QD}, v{H_QD}, v{H_QD}
    s_lshl_b32 s4, s9, 5
    v_lshlrev_b32 v20, 1, v0
    v_add_u32 v20, s4, v20
    s_mov_b64 exec, 0xffff
    ds_write_b16 v20, v{H_QD} offset:{L_KVX}
    s_mov_b64 exec, -1
    {t_b3}:
    s_waitcnt lgkmcnt(0)
    s_barrier
    s_mov_b32 s{SLAY}, 1
    s_mov_b32 s{SSLOW}, 0
    """)
    stamp(a, 14)
    stamp_layer(a)
    a(f"s_branch {htop}")
    kp, w7b, w7j, pp, w7e = lab("kpoll"), lab("w7b"), lab("w7j"), lab("ppoll"), lab("w7e")
    a(f"{t_w7}:")
    reset_counters(a, T, True, [L_BAD])
    a(f"""
    s_cmp_lg_u32 s{SISB}, 0
    s_cbranch_scc1 {kp}x
    """)
    tr_addr(a, 16, 17, 4)
    a(f"""
    v_and_b32 v17, 1, v0
    v_lshl_add_u32 v16, v17, 3, v16
    v_bfe_u32 v17, v0, 1, 1
    v_lshl_add_u32 v16, v17, 13, v16
    v_add_u32 v16, {L_STG}, v16
    """)
    tr_reads(a, H_KB, 16, 8, pitch=16)
    a(f"{kp}x:")
    chunk_addr(a, 17, 18, 4)
    a(f"""
    v_lshlrev_b32 v16, 6, v0
    s_lshl_b32 s4, s{SLAY}, 14
    s_add_u32 s4, s4, {hex(A_KEY)}
    s_add_u32 s5, s4, 4096
    s_add_u32 s10, s4, 8192
    s_add_u32 s11, s4, 12288
    v_mov_b32 v{H_QD}, 0
    v_mov_b32 v{H_QD+1}, 0
    v_mov_b32 v{H_QD+2}, 0
    v_mov_b32 v{H_QD+3}, 0
    s_add_u32 s12, s{SLAY}, 1
    """)
    lds_wait(a, 20, L_KST, "s12", 0)
    a(f"""
    s_mov_b64 vcc, -1
    {kp}:
    """)
    spin(a)
    a(f"""
    s_mov_b64 exec, vcc
    buffer_load_dword v20, v16, {WS}, s4 offen sc1
    buffer_load_dword v21, v16, {WS}, s5 offen sc1
    buffer_load_dword v22, v16, {WS}, s10 offen sc1
    buffer_load_dword v23, v16, {WS}, s11 offen sc1
    s_waitcnt vmcnt(0)
    v_min3_u32 v24, v20, v21, v22
    v_min_u32 v24, v23, v24
    v_cmp_eq_u32 vcc, 0, v24
    s_cbranch_vccnz {kp}
    s_mov_b64 exec, -1
    v_max3_u32 v20, v20, v21, v22
    v_max_u32 v20, v23, v20
    """)
    reduce_fill(a, [20], [SKEY], op="v_max_u32")
    stamp(a, 11)
    a(f"""
    s_and_b32 s12, s{SKEY}, 0x7ff
    s_sub_u32 s12, 2047, s12
    s_lshr_b32 s4, s12, 3
    s_lshl_b32 s4, s4, 10
    s_lshl_b32 s5, s{SLAY}, 19
    s_add_u32 s4, s4, s5
    s_add_u32 s4, s4, {hex(CAND)}
    s_cmp_lg_u32 s{SISB}, 0
    s_cbranch_scc1 {w7b}
    """)
    for s in range(8):
        a(f"buffer_load_dwordx4 {vr(32+4*s,4)}, v17, {WS}, s4 offen offset:{128*s} sc1")
    a(f"""
    v_mov_b32 v20, s{SKEY}
    ds_write_b32 v{H_ZERO}, v20 offset:{L_IDX}
    s_waitcnt lgkmcnt(0)
    """)
    for s in range(8):
        a(f"s_waitcnt vmcnt({7-s})")
        sm16(a, H_QD, 32+4*s, H_KB+8*s, H_IDX)
    D = H_QD
    a(f"""
    v_lshlrev_b32 v19, 1, v0
    s_lshl_b32 s4, s{SLAY}, 14
    s_lshl_b32 s5, s{SCH}, 6
    s_add_u32 s4, s4, s5
    s_add_u32 s4, s4, {hex(A_H)}
    s_nop 2
    v_add_f32 v{D}, v{D}, v{D+1}
    v_cvt_pk_bf16_f32 v{D}, v{D}, v{D}
    v_lshlrev_b32 v{D}, 16, v{D}
    v_mul_f32 v{D+2}, {f32(-LOG2E)}, v{D}
    v_exp_f32 v{D+2}, v{D+2}
    v_mov_b32_dpp v{D+1}, v{D} row_ror:8 row_mask:0xf bank_mask:0xf
    v_add_f32 v{D+2}, 1.0, v{D+2}
    v_rcp_f32 v{D+2}, v{D+2}
    s_nop 0
    v_mul_f32 v{D+2}, v{D}, v{D+2}
    v_cvt_pk_bf16_f32 v{D+2}, v{D+2}, v{D+2}
    v_lshlrev_b32 v{D+2}, 16, v{D+2}
    v_mul_f32 v{D}, v{D+2}, v{D+1}
    """)
    pack_pairs(a, D, D + 1)
    a(f"""
    s_mov_b64 exec, 1
    buffer_store_dwordx4 {vr(D,4)}, off, {WS}, s4 sc1
    s_mov_b64 exec, -1
    s_branch {w7j}
    {w7b}:
    s_lshl_b32 s5, s{SCH}, 5
    s_add_u32 s4, s4, s5
    s_add_u32 s5, s4, 0x40000
    v_and_b32 v19, 14, v0
    v_lshlrev_b32 v19, 1, v19
    buffer_load_dword v21, v19, {WS}, s4 offen sc1
    buffer_load_dword v22, v19, {WS}, s5 offen sc1
    v_mov_b32 v20, s{SKEY}
    ds_write_b32 v{H_ZERO}, v20 offset:{L_IDX}
    s_and_b32 s4, s{SKEY}, 0xffff0000
    s_ashr_i32 s5, s4, 31
    s_not_b32 s5, s5
    s_or_b32 s5, s5, 0x80000000
    s_xor_b32 s4, s4, s5
    s_and_b32 s4, s4, 0xffff0000
    v_mov_b32 v20, s4
    v_mul_f32 v20, {f32(-LOG2E)}, v20
    v_exp_f32 v20, v20
    v_and_b32 v23, 1, v0
    v_add_f32 v20, 1.0, v20
    v_rcp_f32 v20, v20
    v_lshlrev_b32 v23, 4, v23
    v_cvt_pk_bf16_f32 v20, v20, v20
    v_lshlrev_b32 v20, 16, v20
    v_sub_u32 v23, 16, v23
    v_and_b32 v24, 15, v0
    v_lshlrev_b32 v24, 2, v24
    s_mul_i32 s10, s{SLAY}, 7
    s_add_u32 s10, s10, 7
    s_waitcnt vmcnt(0)
    v_lshlrev_b32 v21, v23, v21
    v_lshlrev_b32 v22, v23, v22
    v_and_b32 v21, 0xffff0000, v21
    v_and_b32 v22, 0xffff0000, v22
    {pp}:
    """)
    spin(a)
    a(f"ds_read_b32 v25, v{H_ZERO} offset:{L_PCN}")
    for i in range(7):
        a(f"ds_read_b32 v{32+i}, v24 offset:{L_PART + 64*i}")
    a(f"""
    s_waitcnt lgkmcnt(0)
    v_cmp_ne_u32 vcc, s10, v25
    s_cbranch_vccnz {pp}
    v_add_f32 v32, v32, v33
    v_add_f32 v34, v34, v35
    v_add_f32 v36, v36, v37
    v_add_f32 v32, v32, v34
    v_add_f32 v36, v36, v38
    v_add_f32 v32, v32, v36
    v_cvt_pk_bf16_f32 v32, v32, v32
    v_lshlrev_b32 v32, 16, v32
    v_mul_f32 v32, v32, v20
    v_cvt_pk_bf16_f32 v32, v32, v32
    v_lshlrev_b32 v32, 16, v32
    v_add_f32 v32, v32, v21
    v_cvt_pk_bf16_f32 v32, v32, v32
    v_lshlrev_b32 v32, 16, v32
    v_add_f32 v32, v32, v22
    """)
    pack_pairs(a, 32, 33)
    yo = lab("yout")
    a(f"""
    v_lshlrev_b32 v20, 3, v0
    s_mov_b64 exec, 0x101
    s_cmp_lg_u32 s{SLAY}, 0
    s_cbranch_scc1 {yo}
    s_lshl_b32 s4, s{SCH}, 7
    s_add_u32 s4, s4, {hex(A_Y)}
    buffer_store_dwordx4 v[32:35], v20, {WS}, s4 offen sc1
    s_mov_b64 exec, -1
    s_branch {w7j}
    {yo}:
    s_lshl_b32 s4, s12, 10
    s_lshl_b32 s5, s{SCH}, 5
    s_add_u32 s4, s4, s5
    buffer_store_dwordx4 v[32:35], v19, s[{S_OUT}:{S_OUT+3}], s4 offen
    s_mov_b64 exec, -1
    {w7j}:
    """)
    stamp(a, 12)
    a(f"""
    ds_write_b32 v{H_ZERO}, v{H_ONE} offset:{L_DUTY}
    s_cmp_eq_u32 s{SLAY}, 0
    s_cbranch_scc1 {t_b3}
    s_lshr_b32 s4, s12, 3
    s_cmp_eq_u32 s4, s{SG}
    s_cbranch_scc1 {fin}
    v_and_b32 v20, 7, v0
    v_lshlrev_b32 v20, 2, v20
    ds_read_b32 v20, v20 offset:{L_KEY}
    s_waitcnt lgkmcnt(0)
    """)
    reduce_fill(a, [20], [4], op="v_max_u32")
    a(f"""
    s_and_b32 s4, s4, 0x7ff
    s_sub_u32 s4, 2047, s4
    s_and_b32 s5, s4, 7
    s_mul_i32 s5, s5, {XP}
    v_add_u32 v20, s5, v{H_LANE16}
    ds_read_b128 v[24:27], v20 offset:{L_XR}
    s_lshl_b32 s4, s4, 10
    s_waitcnt lgkmcnt(0)
    buffer_store_dwordx4 v[24:27], v{H_LANE16}, s[{S_OUT}:{S_OUT+3}], s4 offen
    {fin}:
    """)
    stamp_flush(a)
    a(f"{end}:")
    a("s_endpgm")
    hs = lab("hslow")
    a(f"""
    {slow}:
    s_mov_b32 s{SSLOW}, 1
    s_waitcnt vmcnt(0) lgkmcnt(0)
    s_barrier
    s_cmp_ge_u32 s{SW}, 4
    s_cbranch_scc1 {hs}
    v_lshlrev_b32 v{C_QA}, 4, v0
    v_lshlrev_b32 v{C_OP4}, 2, v0
    s_lshl_b32 s4, s{SW}, 8
    s_add_u32 s4, s4, {L_MX}
    v_add_u32 v{C_OP16}, s4, v{C_OP4}
    s_mov_b32 s12, 8
    """)
    l1 = lab("mx")
    a(f"{l1}:")
    a(f"ds_read_b128 {vr(C_Q[0],4)}, v{C_QA}")
    a(f"v_mov_b32 v{C_T}, 0xff800000")
    a("s_waitcnt lgkmcnt(0)")
    for t in range(16):
        qk(a, C_S[0], t, C_Q[0])
        a("s_nop 15")
        for i in range(8):
            a(f"v_max3_f32 v{C_T}, v{C_S[0]+2*i}, v{C_S[0]+2*i+1}, v{C_T}")
    a(f"""
    ds_write_b32 v{C_OP16}, v{C_T}
    v_add_u32 v{C_OP16}, 1024, v{C_OP16}
    v_add_u32 v{C_QA}, {QS}, v{C_QA}
    s_sub_u32 s12, s12, 1
    s_cmp_lg_u32 s12, 0
    s_cbranch_scc1 {l1}
    s_waitcnt lgkmcnt(0)
    s_barrier
    v_lshlrev_b32 v{C_QA}, 4, v0
    s_mul_i32 s4, s{SW}, {OPW}
    s_add_u32 s4, s4, {L_OP}
    v_add_u32 v{C_OP16}, s4, v{C_QA}
    s_add_u32 s4, s4, 2048
    v_add_u32 v{C_OP4}, s4, v{C_OP4}
    v_and_b32 v1, 31, v0
    v_lshlrev_b32 v1, 2, v1
    v_add_u32 v1, {L_MX}, v1
    s_mov_b32 s10, {OPB}
    s_mov_b32 s11, {-OPB}
    s_mov_b32 s12, 8
    """)
    l2 = lab("sl")
    a(f"{l2}:")
    a(f"ds_read_b128 {vr(C_Q[0],4)}, v{C_QA}")
    for i in range(8):
        a(f"ds_read_b32 v{C_S[1]+i}, v1 offset:{128*i}")
    for i in range(16):
        a(f"v_mov_b32 v{C_O+i}, 0")
    a("s_waitcnt lgkmcnt(0)")
    a(f"""
    v_max3_f32 v{C_T}, v{C_S[1]}, v{C_S[1]+1}, v{C_S[1]+2}
    v_max3_f32 v{C_T}, v{C_S[1]+3}, v{C_S[1]+4}, v{C_T}
    v_max3_f32 v{C_T}, v{C_S[1]+5}, v{C_S[1]+6}, v{C_T}
    v_max_f32 v{C_T}, v{C_S[1]+7}, v{C_T}
    """)
    for t in range(16):
        qk(a, C_S[0], t, C_Q[0])
        a("s_nop 15")
        for i in range(16):
            a(f"v_sub_f32 v{C_S[0]+i}, v{C_S[0]+i}, v{C_T}")
        ex(a, C_S[0], 0, 16)
        a("s_nop 1")
        pv(a, 2*t, C_S[0])
        pv(a, 2*t+1, C_S[0]+8)
    a("s_nop 15")
    o_out(a, 0)
    a(f"""
    s_bitcmp0_b32 s12, 0
    s_cselect_b32 s4, s10, s11
    v_add_u32 v{C_OP16}, s4, v{C_OP16}
    v_add_u32 v{C_OP4}, s4, v{C_OP4}
    v_add_u32 v{C_QA}, {QS}, v{C_QA}
    v_add_u32 v1, 1024, v1
    s_waitcnt lgkmcnt(0)
    s_barrier
    s_sub_u32 s12, s12, 1
    s_cmp_lg_u32 s12, 0
    s_cbranch_scc1 {l2}
    s_branch {epi}
    {hs}:
    """)
    h_sentinels(a)
    reset_counters(a, H_T + 4, False)
    for i in range(32):
        a(f"v_mov_b32 v{H_ACC+i}, 0")
    a("s_waitcnt lgkmcnt(0)")
    a("s_barrier")
    for b in range(8):
        h_wo_loads(a, H_BO, b)
        a("s_waitcnt lgkmcnt(0)")
        a("s_barrier")
        h_njob(a, b, 0)
        h_ojob(a, H_BO, b, 0)
    h_finish(a, True)
    a(f"s_branch {epi}")
    return kstart(name) + a.text() + kd(name, 256)

def build(force_slow=False):
    hdr = open("cdna_kernels/" + NAME + ".s.ref").read().split("; Override launch")[0]
    s = hdr + f"; @launch grid=(256,1,1) block=(512,1,1) lds={L_END}\n"
    s += '.amdgcn_target "amdgcn-amd-amdhsa--gfx950"\n'
    s += gen(force_slow)
    return s

if __name__ == "__main__":
    out = sys.argv[1] if len(sys.argv) > 1 else "cdna_kernels/" + NAME + ".s"
    STAMPS = "--stamp" in sys.argv
    DBGSTAMP = "--dbg" in sys.argv
    open(out, "w").write(build("--slow" in sys.argv))
    print("L_END", L_END)
```
